```python
import torch

def _softmax(x, axis=-1):
    return torch.softmax(x, dim=axis)
def _gelu(x):
    return torch.nn.functional.gelu(x, approximate="tanh")
def _silu(x):
    return torch.nn.functional.silu(x)
def _sigmoid(x):
    return torch.sigmoid(x)
def _layernorm(x, axis=-1, eps=1e-5):
    m = x.mean(dim=axis, keepdim=True)
    v = x.var(dim=axis, keepdim=True, unbiased=False)
    return (x - m) / torch.sqrt(v + eps)
def _scatter_add(tgt, idx, src, axis=0):
    return tgt.clone().index_add_(axis, idx, src)
def _segment_sum(src, seg, n):
    out = torch.zeros((n,) + src.shape[1:], dtype=src.dtype)
    return out.index_add_(0, seg, src)
def _pad(x, pw):
    flat = tuple(v for pair in reversed(pw) for v in pair)
    return torch.nn.functional.pad(x, flat)

kernel_name = 'standalone__self_sup_conv_stem_hubert__speech'

def setup_inputs():

    _w = (lambda a: (lambda t: t.to(torch.bfloat16) if t.is_floating_point() else t)(torch.as_tensor(a)))
    B, T, D, K = 2, 4000, 256, 31
    scale = (1.0 / (K * D)) ** 0.5
    return {
        "x": _w((lambda *s: torch.randn(*s, dtype=torch.bfloat16) * 0.05)(B, T, D)),
        "w": _w((lambda *s: torch.randn(*s, dtype=torch.bfloat16) * 0.05)(K, D, D) * scale),
        "b": _w((lambda *s: torch.randn(*s, dtype=torch.bfloat16) * 0.05)(D) * 0.1),
        "gamma": _w(torch.ones((D,), dtype=float)),
        "beta": _w(torch.zeros((D,), dtype=float)),
    }

def reference(x, w, b, gamma, beta):
    B, T, D = x.shape
    K = w.shape[0]
    s = 2
    L = (T - K) // s + 1
    y = torch.einsum('blc,cd->bld', x[:, 0 : s * L : s, :], w[0])
    for i in range(1, K):
        y = y + torch.einsum('blc,cd->bld', x[:, i : i + s * L : s, :], w[i])
    y = y + b[None, None, :]
    mu = y.mean(1, keepdims=True)
    var = ((y - mu) ** 2).mean(1, keepdims=True)
    yn = (y - mu) / torch.sqrt(var + 1e-5)
    yn = yn * gamma[None, None, :] + beta[None, None, :]
    return _gelu(yn)
```

```python
import sys, re

OUT = "standalone__self_sup_conv_stem_hubert__speech.s"

B_, T_, D_, K_ = 2, 4000, 256, 31
L_ = (T_ - K_) // 2 + 1
X_BYTES = B_ * T_ * D_ * 2
W_BYTES = K_ * D_ * D_ * 2
O_BYTES = B_ * L_ * D_ * 2
NRT = 16
WS_STATS_BYTES = B_ * NRT * D_ * 8

XB_SIZE = 40960
PLANE = 20480
RING = 8
WRING0 = 2 * XB_SIZE
LDS1 = WRING0 + 8 * RING * 1024

lines = []
def E(s=""):
    m = re.search(r"buffer_\S+ .*offset:(\d+)", s)
    assert not m or int(m.group(1)) < 4096, s
    m = re.search(r"ds_\S+ .*offset:(\d+)", s)
    assert not m or int(m.group(1)) < 65536, s
    lines.append(s)

S_X, S_W, S_O, S_WSR, S_BI = 16, 20, 24, 28, 32
s_wave = 36
s_b, s_rt, s_ct = 37, 38, 39
s_wchunk = 40
s_wring = 41
s_xb0, s_xb1 = 42, 43
s_xbn = 44
s_x5w = 45
s_xlds = 46
s_xoff = 48
s_cc = 53
s_tmp = 54
s_tmp2 = 55
s_l0 = 56
s_n0 = 57
s_t = 58
v_lane, v_m, v_g = 1, 2, 3
v_Aa, v_Ab, v_At, v_Ak = 4, 5, 6, 7
v_Bl, v_Wl, v_X0, v_X1 = 8, 9, 10, 11
v_bias = 12
v_tmp = 13
ACC = 64
FA = [128, 148]
FB = [144, 164]


class VM:
    def __init__(self):
        self.ops = []
    def issue(self, tag):
        self.ops.append(tag)
    def need(self, tags):
        last = -1
        for i, t in enumerate(self.ops):
            if t in tags:
                last = i
        assert last >= 0, tags
        return len(self.ops) - 1 - last


def gen_conv():
    E(".globl conv_kernel")
    E(".p2align 8")
    E(".type conv_kernel,@function")
    E("conv_kernel:")
    E("    s_cmp_ge_u32 s2, 256")
    E("    s_cbranch_scc1 L1_end")
    E("    s_load_dwordx4 s[4:7], s[0:1], 0")
    E("    s_load_dwordx2 s[8:9], s[0:1], 16")
    E("    s_load_dwordx2 s[10:11], s[0:1], 40")
    E("    s_load_dwordx2 s[12:13], s[0:1], 56")
    E(f"    v_and_b32 v{v_lane}, 63, v0")
    E(f"    v_lshrrev_b32 v{v_tmp}, 6, v0")
    E(f"    v_and_b32 v{v_m}, 31, v0")
    E(f"    v_lshrrev_b32 v{v_g}, 5, v{v_lane}")
    E(f"    v_readfirstlane_b32 s{s_wave}, v{v_tmp}")
    E(f"    s_and_b32 s{s_t}, s2, 7")
    E(f"    s_lshr_b32 s{s_t+1}, s2, 3")
    E(f"    s_lshr_b32 s{s_b}, s{s_t}, 2")
    E(f"    s_and_b32 s{s_t}, s{s_t}, 3")
    E(f"    s_lshl_b32 s{s_t}, s{s_t}, 1")
    E(f"    s_and_b32 s{s_t+2}, s{s_t+1}, 1")
    E(f"    s_or_b32 s{s_ct}, s{s_t}, s{s_t+2}")
    E(f"    s_lshr_b32 s{s_rt}, s{s_t+1}, 1")
    E(f"    s_lshl_b32 s{s_l0}, s{s_rt}, 7")
    E(f"    s_lshl_b32 s{s_n0}, s{s_ct}, 5")
    E("    s_waitcnt lgkmcnt(0)")
    def srd(d, lo, size):
        E(f"    s_mov_b32 s{d}, s{lo}")
        E(f"    s_mov_b32 s{d+1}, s{lo+1}")
        E(f"    s_mov_b32 s{d+2}, {size}")
        E(f"    s_mov_b32 s{d+3}, 0x00020000")
    srd(S_X, 4, X_BYTES)
    srd(S_W, 6, W_BYTES)
    srd(S_BI, 8, 512)
    srd(S_O, 10, O_BYTES)
    srd(S_WSR, 12, WS_STATS_BYTES)
    vm = VM()
    E(f"    v_add_u32 v{v_tmp}, s{s_n0}, v{v_m}")
    E(f"    v_lshlrev_b32 v{v_tmp}, 1, v{v_tmp}")
    E(f"    buffer_load_ushort v{v_bias}, v{v_tmp}, s[{S_BI}:{S_BI+3}], 0 offen")
    vm.issue("bias")
    E(f"    v_lshrrev_b32 v{v_tmp}, 3, v{v_lane}")
    E(f"    v_and_b32 v{v_tmp+1}, 7, v{v_lane}")
    E(f"    v_lshrrev_b32 v{v_tmp+2}, 1, v{v_tmp}")
    E(f"    v_xor_b32 v{v_tmp+1}, v{v_tmp+1}, v{v_tmp+2}")
    E(f"    v_lshlrev_b32 v{v_tmp+1}, 4, v{v_tmp+1}")
    E(f"    v_lshlrev_b32 v{v_tmp}, 10, v{v_tmp}")
    E(f"    v_or_b32 v{v_tmp}, v{v_tmp}, v{v_tmp+1}")
    E(f"    s_and_b32 s{s_t}, s{s_wave}, 1")
    E(f"    s_lshl_b32 s{s_t}, s{s_t}, 6")
    E(f"    v_xor_b32 v{v_X0}, s{s_t}, v{v_tmp}")
    E(f"    v_xor_b32 v{v_X1}, 64, v{v_X0}")
    E(f"    s_mul_i32 s{s_t}, s{s_b}, {T_}")
    E(f"    s_lshl_b32 s{s_t+1}, s{s_rt}, 8")
    E(f"    s_add_u32 s{s_t}, s{s_t}, s{s_t+1}")
    E(f"    s_mul_i32 s{s_t+1}, s{s_wave}, 5")
    for i in range(5):
        E(f"    s_add_u32 s{s_t+2}, s{s_t+1}, {i}")
        E(f"    s_cmp_ge_u32 s{s_t+2}, 20")
        E(f"    s_cselect_b32 s{s_t+3}, 1, 0")
        E(f"    s_cselect_b32 s{s_t+4}, 20, 0")
        E(f"    s_sub_u32 s{s_t+2}, s{s_t+2}, s{s_t+4}")
        E(f"    s_lshl_b32 s{s_t+2}, s{s_t+2}, 4")
        E(f"    s_add_u32 s{s_t+2}, s{s_t+2}, s{s_t+3}")
        E(f"    s_add_u32 s{s_t+2}, s{s_t+2}, s{s_t}")
        E(f"    s_lshl_b32 s{s_xoff+i}, s{s_t+2}, 9")
    E(f"    s_lshl_b32 s{s_x5w}, s{s_t+1}, 10")
    for i in range(5):
        E(f"    s_add_u32 m0, s{s_x5w}, {i*1024}")
        E(f"    s_nop 0")
        vx = v_X0 if i % 2 == 0 else v_X1
        E(f"    buffer_load_dwordx4 v{vx}, s[{S_X}:{S_X+3}], s{s_xoff+i} offen lds")
        vm.issue("x0")
    for i in range(5):
        E(f"    s_add_u32 s{s_xoff+i}, s{s_xoff+i}, 128")
    E(f"    v_lshrrev_b32 v{v_tmp}, 2, v{v_lane}")
    E(f"    v_lshlrev_b32 v{v_tmp}, 9, v{v_tmp}")
    E(f"    v_and_b32 v{v_tmp+1}, 3, v{v_lane}")
    E(f"    v_lshlrev_b32 v{v_tmp+1}, 4, v{v_tmp+1}")
    E(f"    v_or_b32 v{v_Wl}, v{v_tmp}, v{v_tmp+1}")
    E(f"    s_lshl_b32 s{s_wchunk}, s{s_wave}, 19")
    E(f"    s_lshl_b32 s{s_t}, s{s_n0}, 1")
    E(f"    s_add_u32 s{s_wchunk}, s{s_wchunk}, s{s_t}")
    E(f"    s_lshl_b32 s{s_wring}, s{s_wave}, 13")
    E(f"    s_add_u32 s{s_wring}, s{s_wring}, {WRING0}")

    def wconst(s):
        c, ss = divmod(s, 16)
        j, ks = divmod(ss, 4)
        return j * 131072 + ks * 8192 + c * 32768
    for s in range(7):
        E(f"    s_add_u32 m0, s{s_wring}, {s*1024}")
        E(f"    s_add_u32 s{s_tmp}, s{s_wchunk}, {wconst(s)}")
        E(f"    buffer_load_dwordx4 v{v_Wl}, s[{S_W}:{S_W+3}], s{s_tmp} offen lds")
        vm.issue(("w", 0, s))
    E(f"    s_lshl_b32 s{s_t}, s{s_wave}, 1")
    for which, dst in ((0, v_Aa), (1, v_Ab)):
        E(f"    v_add_u32 v{v_tmp}, s{s_t}, v{v_m}")
        if which:
            E(f"    v_add_u32 v{v_tmp}, 1, v{v_tmp}")
        E(f"    v_lshrrev_b32 v{v_tmp+1}, 1, v{v_tmp}")
        E(f"    v_and_b32 v{v_tmp+1}, 7, v{v_tmp+1}")
        E(f"    v_xor_b32 v{v_tmp+1}, v{v_g}, v{v_tmp+1}")
        E(f"    v_lshlrev_b32 v{v_tmp+1}, 4, v{v_tmp+1}")
        E(f"    v_lshlrev_b32 v{v_tmp}, 7, v{v_tmp}")
        E(f"    v_or_b32 v{dst}, v{v_tmp}, v{v_tmp+1}")
    E(f"    v_and_b32 v{v_tmp}, 15, v{v_lane}")
    E(f"    v_lshrrev_b32 v{v_tmp+1}, 2, v{v_tmp}")
    E(f"    v_and_b32 v{v_tmp+2}, 3, v{v_tmp}")
    E(f"    v_lshlrev_b32 v{v_tmp+3}, 3, v{v_g}")
    E(f"    v_add_u32 v{v_tmp+3}, v{v_tmp+3}, v{v_tmp+1}")
    E(f"    v_lshlrev_b32 v{v_tmp+3}, 6, v{v_tmp+3}")
    E(f"    v_lshrrev_b32 v{v_tmp+1}, 4, v{v_lane}")
    E(f"    v_and_b32 v{v_tmp+1}, 1, v{v_tmp+1}")
    E(f"    v_lshlrev_b32 v{v_tmp+1}, 5, v{v_tmp+1}")
    E(f"    v_add_u32 v{v_tmp+3}, v{v_tmp+3}, v{v_tmp+1}")
    E(f"    v_lshlrev_b32 v{v_tmp+2}, 3, v{v_tmp+2}")
    E(f"    v_add_u32 v{v_tmp+3}, v{v_tmp+3}, v{v_tmp+2}")
    E(f"    v_add_u32 v{v_Bl}, s{s_wring}, v{v_tmp+3}")
    for r in range(64):
        E(f"    v_mov_b32 v{ACC+r}, 0")
    E(f"    s_mov_b32 s{s_xb0}, 0")
    E(f"    s_mov_b32 s{s_xb1}, {PLANE}")
    E(f"    s_mov_b32 s{s_xbn}, {XB_SIZE}")
    E(f"    s_add_u32 s{s_xlds}, s{s_xbn}, s{s_x5w}")
    E(f"    s_mov_b32 s{s_cc}, 0")
    E(f"    s_cmp_eq_u32 s{s_wave}, 7")
    E(f"    s_cselect_b64 vcc, -1, 0")

    def reads(sn, st):
        j, ks = divmod(sn, 4)
        slot = sn % RING
        E(f"    ds_read_b64_tr_b16 v[{FB[st]}:{FB[st]+1}], v{v_Bl} offset:{slot*1024}")
        E(f"    ds_read_b64_tr_b16 v[{FB[st]+2}:{FB[st]+3}], v{v_Bl} offset:{slot*1024+256}")
        if ks == 0:
            E(f"    v_add_u32 v{v_At}, s{s_xb1 if (j & 1) else s_xb0}, v{v_Ab if (j >> 1) else v_Aa}")
            av = v_At
        else:
            E(f"    v_xor_b32 v{v_Ak}, {32*ks}, v{v_At}")
            av = v_Ak
        for f in range(4):
            E(f"    ds_read_b128 v[{FA[st]+4*f}:{FA[st]+4*f+3}], v{av} offset:{f*4096}")

    E(f"    s_waitcnt vmcnt({vm.need({'x0'})})")
    E("    s_barrier")
    E(f"    s_waitcnt vmcnt({vm.need({('w',0,0)})})")
    reads(0, 0)

    def body(emit, vm, it, Ns):
        out = []
        def e(s):
            out.append(s)
        for s in range(16):
            cur, nxt = s % 2, 1 - s % 2
            sn = (s + 1) % 16
            def mfma(f):
                if s >= 12:
                    e(f"    s_cbranch_vccnz L1_skip_{s}_{f}")
                e(f"    v_mfma_f32_32x32x16_bf16 v[{ACC+16*f}:{ACC+16*f+15}], v[{FA[cur]+4*f}:{FA[cur]+4*f+3}], v[{FB[cur]}:{FB[cur]+3}], v[{ACC+16*f}:{ACC+16*f+15}]")
                if s >= 12:
                    e(f"L1_skip_{s}_{f}:")
            e(f"    ; ---- step {s}")
            e("    s_waitcnt lgkmcnt(0)")
            mfma(0)
            if s == 15:
                n = vm.need({("x", it + 1)})
                key = ("xwait",)
                Ns[key] = min(Ns.get(key, 63), n)
                e(f"    s_waitcnt vmcnt({Ns[key]})")
                e("    s_barrier")
                e(f"    s_xor_b32 s{s_xb0}, s{s_xb0}, {XB_SIZE}")
                e(f"    s_xor_b32 s{s_xb1}, s{s_xb1}, {XB_SIZE}")
                e(f"    s_xor_b32 s{s_xbn}, s{s_xbn}, {XB_SIZE}")
                e(f"    s_add_u32 s{s_xlds}, s{s_xbn}, s{s_x5w}")
            gs = it * 16 + s + 1
            n = vm.need({("w", gs // 16, gs % 16)})
            key = ("wwait", s)
            Ns[key] = min(Ns.get(key, 63), n)
            e(f"    s_waitcnt vmcnt({Ns[key]})")
            j, ks = divmod(sn, 4)
            slot = sn % RING
            e(f"    ds_read_b64_tr_b16 v[{FB[nxt]}:{FB[nxt]+1}], v{v_Bl} offset:{slot*1024}")
            e(f"    ds_read_b64_tr_b16 v[{FB[nxt]+2}:{FB[nxt]+3}], v{v_Bl} offset:{slot*1024+256}")
            if ks == 0:
                e(f"    v_add_u32 v{v_At}, s{s_xb1 if (j & 1) else s_xb0}, v{v_Ab if (j >> 1) else v_Aa}")
                av = v_At
            else:
                e(f"    v_xor_b32 v{v_Ak}, {32*ks}, v{v_At}")
                av = v_Ak
            for f in range(4):
                e(f"    ds_read_b128 v[{FA[nxt]+4*f}:{FA[nxt]+4*f+3}], v{av} offset:{f*4096}")
            mfma(1)
            e(f"    s_add_u32 m0, s{s_wring}, {((s+7) % RING)*1024}")
            e(f"    s_add_u32 s{s_tmp}, s{s_wchunk}, {wconst(s+7)}")
            e(f"    buffer_load_dwordx4 v{v_Wl}, s[{S_W}:{S_W+3}], s{s_tmp} offen lds")
            g7 = it * 16 + s + 7
            vm.issue(("w", g7 // 16, g7 % 16))
            mfma(2)
            if s in (0, 2, 4, 6, 8):
                i = s // 2
                e(f"    s_add_u32 m0, s{s_xlds}, {i*1024}")
                e(f"    s_nop 0")
                vx = v_X0 if i % 2 == 0 else v_X1
                e(f"    buffer_load_dwordx4 v{vx}, s[{S_X}:{S_X+3}], s{s_xoff+i} offen lds")
                vm.issue(("x", it + 1))
            mfma(3)
        e(f"    s_add_u32 s{s_wchunk}, s{s_wchunk}, 32768")
        for i in range(5):
            e(f"    s_add_u32 s{s_xoff+i}, s{s_xoff+i}, 128")
        return out

    import copy
    Ns = {}
    vms = copy.deepcopy(vm)
    for it in range(4):
        body(False, vms, it, Ns)
    vms = copy.deepcopy(vm)
    for it in range(4):
        body(False, vms, it, Ns)
    vms = copy.deepcopy(vm)
    text = body(True, vms, 0, Ns)
    E("L1_loop:")
    for t in text:
        E(t)
    E(f"    s_add_u32 s{s_cc}, s{s_cc}, 1")
    E(f"    s_cmp_lt_u32 s{s_cc}, 4")
    E("    s_cbranch_scc1 L1_loop")

    E("    s_waitcnt vmcnt(0) lgkmcnt(0)")
    E("    s_nop 15")
    E("    s_nop 7")
    E("    s_barrier")
    E(f"    s_lshl_b32 s{s_t}, s{s_wave}, 14")
    E(f"    v_lshlrev_b32 v{v_tmp}, 4, v{v_lane}")
    E(f"    v_add_u32 v{v_tmp+1}, s{s_t}, v{v_tmp}")
    for rg in range(16):
        E(f"    ds_write_b128 v{v_tmp+1}, v[{ACC+4*rg}:{ACC+4*rg+3}] offset:{rg*1024}")
    E("    s_waitcnt lgkmcnt(0)")
    E("    s_barrier")
    E(f"    s_lshl_b32 s{s_t}, s{s_wave}, 11")
    E(f"    v_add_u32 v{v_tmp+1}, s{s_t}, v{v_tmp}")
    E(f"    v_add_u32 v{v_tmp+2}, 0x10000, v{v_tmp+1}")
    P0 = 64
    for sw in range(8):
        base = v_tmp + 1 if sw < 4 else v_tmp + 2
        off = (sw % 4) * 16384
        E(f"    ds_read_b128 v[{P0+8*sw}:{P0+8*sw+3}], v{base} offset:{off}")
        E(f"    ds_read_b128 v[{P0+8*sw+4}:{P0+8*sw+7}], v{base} offset:{off+1024}")
    E("    s_waitcnt lgkmcnt(0)")
    Y = 32
    for i in range(8):
        E(f"    v_add_f32 v{Y+i}, v{P0+i}, v{P0+8+i}")
    for sw in range(2, 8):
        for i in range(8):
            E(f"    v_add_f32 v{Y+i}, v{Y+i}, v{P0+8*sw+i}")
    E(f"    v_lshlrev_b32 v{v_bias}, 16, v{v_bias}")
    PK = 40
    def round8(src, dst):
        for i in range(4):
            E(f"    v_cvt_pk_bf16_f32 v{PK+i}, v{src+2*i}, v{src+2*i+1}")
        for i in range(4):
            E(f"    v_lshlrev_b32 v{dst+2*i}, 16, v{PK+i}")
            E(f"    v_and_b32 v{dst+2*i+1}, 0xffff0000, v{PK+i}")
    round8(Y, Y)
    for i in range(8):
        E(f"    v_add_f32 v{Y+i}, v{Y+i}, v{v_bias}")
    round8(Y, Y)
    E(f"    s_lshl_b32 s{s_t}, s{s_wave}, 10")
    E(f"    s_add_u32 s{s_t}, s{s_t}, 131072")
    E(f"    v_lshlrev_b32 v{v_tmp}, 8, v{v_g}")
    E(f"    v_lshlrev_b32 v{v_tmp+1}, 1, v{v_m}")
    E(f"    v_add_u32 v{v_tmp}, v{v_tmp}, v{v_tmp+1}")
    E(f"    v_add_u32 v{v_tmp}, s{s_t}, v{v_tmp}")
    for p in range(4):
        r0 = 8 * (p // 2) + 2 * (p % 2)
        E(f"    ds_write_b16 v{v_tmp}, v{PK+p} offset:{r0*64}")
        E(f"    ds_write_b16_d16_hi v{v_tmp}, v{PK+p} offset:{(r0+1)*64}")
    E(f"    v_lshlrev_b32 v{v_tmp+1}, 4, v{v_lane}")
    E(f"    v_add_u32 v{v_tmp+1}, s{s_t}, v{v_tmp+1}")
    E("    s_waitcnt lgkmcnt(0)")
    E(f"    ds_read_b128 v[44:47], v{v_tmp+1}")
    E(f"    s_lshl_b32 s{s_t}, s{s_wave}, 4")
    E(f"    s_add_u32 s{s_t}, s{s_t}, s{s_l0}")
    E(f"    v_lshrrev_b32 v{v_tmp+2}, 2, v{v_lane}")
    E(f"    v_add_u32 v{v_tmp+2}, s{s_t}, v{v_tmp+2}")
    E(f"    s_mul_i32 s{s_t+1}, s{s_b}, {L_}")
    E(f"    v_add_u32 v{v_tmp+3}, s{s_t+1}, v{v_tmp+2}")
    E(f"    v_lshlrev_b32 v{v_tmp+3}, 9, v{v_tmp+3}")
    E(f"    v_and_b32 v{v_tmp+4}, 3, v{v_lane}")
    E(f"    v_lshlrev_b32 v{v_tmp+4}, 4, v{v_tmp+4}")
    E(f"    v_add_u32 v{v_tmp+3}, v{v_tmp+3}, v{v_tmp+4}")
    E(f"    s_lshl_b32 s{s_t+1}, s{s_n0}, 1")
    E(f"    v_add_u32 v{v_tmp+3}, s{s_t+1}, v{v_tmp+3}")
    E(f"    v_cmp_gt_u32 vcc, {L_}, v{v_tmp+2}")
    E(f"    s_and_saveexec_b64 s[{s_t+2}:{s_t+3}], vcc")
    E("    s_cbranch_execz L1_nostore")
    E("    s_waitcnt lgkmcnt(0)")
    E(f"    buffer_store_dwordx4 v[44:47], v{v_tmp+3}, s[{S_O}:{S_O+3}], 0 offen")
    E("L1_nostore:")
    E(f"    s_mov_b64 exec, s[{s_t+2}:{s_t+3}]")
    E(f"    s_sub_u32 s{s_t}, {L_}, s{s_t}")
    E(f"    v_lshlrev_b32 v{v_tmp}, 2, v{v_g}")
    E(f"    v_sub_u32 v{v_tmp}, s{s_t}, v{v_tmp}")
    MV = 48
    for i in range(8):
        c = 8 * (i // 4) + i % 4
        E(f"    v_cmp_lt_i32 vcc, {c}, v{v_tmp}")
        E(f"    s_nop 1")
        E(f"    v_cndmask_b32 v{MV+i}, 0, v{Y+i}, vcc")
    E(f"    v_add_f32 v{v_tmp+1}, v{MV}, v{MV+1}")
    for i in range(2, 8):
        E(f"    v_add_f32 v{v_tmp+1}, v{v_tmp+1}, v{MV+i}")
    def xhalf(v, t):
        E(f"    v_mov_b32 v{t}, v{v}")
        E("    s_nop 1")
        E(f"    v_permlane32_swap_b32 v{v}, v{t}")
        E("    s_nop 1")
        E(f"    v_add_f32 v{v}, v{v}, v{t}")
    xhalf(v_tmp + 1, v_tmp + 2)
    ST0 = 131072 + 8192
    E(f"    v_lshlrev_b32 v{v_tmp+3}, 5, v{v_m}")
    E(f"    s_lshl_b32 s{s_t}, s{s_wave}, 2")
    E(f"    s_add_u32 s{s_t}, s{s_t}, {ST0}")
    E(f"    v_add_u32 v{v_tmp+3}, s{s_t}, v{v_tmp+3}")
    E(f"    ds_write_b32 v{v_tmp+3}, v{v_tmp+1}")
    E("    s_waitcnt lgkmcnt(0)")
    E("    s_barrier")
    E(f"    v_lshlrev_b32 v{v_tmp+4}, 5, v{v_m}")
    E(f"    v_add_u32 v{v_tmp+4}, {ST0}, v{v_tmp+4}")
    E(f"    ds_read_b128 v[56:59], v{v_tmp+4}")
    E(f"    ds_read_b128 v[60:63], v{v_tmp+4} offset:16")
    E("    s_waitcnt lgkmcnt(0)")
    E(f"    v_add_f32 v{v_tmp+5}, v56, v57")
    for r in range(58, 64):
        E(f"    v_add_f32 v{v_tmp+5}, v{v_tmp+5}, v{r}")
    E(f"    s_sub_u32 s{s_t}, {L_}, s{s_l0}")
    E(f"    s_min_u32 s{s_t}, s{s_t}, 128")
    E(f"    v_cvt_f32_u32 v{v_tmp+6}, s{s_t}")
    E(f"    v_rcp_f32 v{v_tmp+6}, v{v_tmp+6}")
    E("    s_nop 0")
    E(f"    v_mul_f32 v{v_tmp+5}, v{v_tmp+5}, v{v_tmp+6}")
    for i in range(8):
        c = 8 * (i // 4) + i % 4
        E(f"    v_sub_f32 v{MV+i}, v{Y+i}, v{v_tmp+5}")
        E(f"    v_cmp_lt_i32 vcc, {c}, v{v_tmp}")
        E(f"    s_nop 1")
        E(f"    v_cndmask_b32 v{MV+i}, 0, v{MV+i}, vcc")
    E(f"    v_mul_f32 v{v_tmp+1}, v{MV}, v{MV}")
    for i in range(1, 8):
        E(f"    v_fma_f32 v{v_tmp+1}, v{MV+i}, v{MV+i}, v{v_tmp+1}")
    xhalf(v_tmp + 1, v_tmp + 2)
    E(f"    ds_write_b32 v{v_tmp+3}, v{v_tmp+1} offset:1024")
    E("    s_waitcnt lgkmcnt(0)")
    E("    s_barrier")
    E(f"    s_cmp_lg_u32 s{s_wave}, 0")
    E("    s_cbranch_scc1 L1_end")
    E(f"    ds_read_b128 v[56:59], v{v_tmp+4} offset:1024")
    E(f"    ds_read_b128 v[60:63], v{v_tmp+4} offset:1040")
    E("    s_waitcnt lgkmcnt(0)")
    E(f"    v_add_f32 v{v_tmp+6}, v56, v57")
    for r in range(58, 64):
        E(f"    v_add_f32 v{v_tmp+6}, v{v_tmp+6}, v{r}")
    E(f"    s_lshl_b32 s{s_t}, s{s_b}, 4")
    E(f"    s_add_u32 s{s_t}, s{s_t}, s{s_rt}")
    E(f"    s_lshl_b32 s{s_t}, s{s_t}, 8")
    E(f"    s_add_u32 s{s_t}, s{s_t}, s{s_n0}")
    E(f"    v_add_u32 v{v_tmp+7}, s{s_t}, v{v_m}")
    E(f"    v_lshlrev_b32 v{v_tmp+7}, 3, v{v_tmp+7}")
    E(f"    v_mov_b32 v56, v{v_tmp+5}")
    E(f"    v_mov_b32 v57, v{v_tmp+6}")
    E(f"    v_cmp_gt_u32 vcc, 32, v{v_lane}")
    E(f"    s_and_saveexec_b64 s[{s_t+2}:{s_t+3}], vcc")
    E(f"    buffer_store_dwordx2 v[56:57], v{v_tmp+7}, s[{S_WSR}:{S_WSR+3}], 0 offen")
    E("L1_end:")
    E("    s_endpgm")


def gen_norm():
    S_O2, S_WS2, S_G, S_BE = 16, 20, 24, 28
    s_wave, s_b, s_rt, s_ct, s_l0, s_n0, s_t = 36, 37, 38, 39, 40, 41, 44
    E(".globl norm_kernel")
    E(".p2align 8")
    E(".type norm_kernel,@function")
    E("norm_kernel:")
    E("    s_cmp_ge_u32 s2, 256")
    E("    s_cbranch_scc1 L2_end")
    E("    s_load_dwordx4 s[4:7], s[0:1], 24")
    E("    s_load_dwordx2 s[10:11], s[0:1], 40")
    E("    s_load_dwordx2 s[12:13], s[0:1], 56")
    E("    v_and_b32 v1, 63, v0")
    E("    v_lshrrev_b32 v5, 6, v0")
    E("    v_and_b32 v2, 31, v0")
    E("    v_lshrrev_b32 v3, 5, v1")
    E(f"    v_readfirstlane_b32 s{s_wave}, v5")
    E(f"    s_and_b32 s{s_t}, s2, 7")
    E(f"    s_lshr_b32 s{s_t+1}, s2, 3")
    E(f"    s_lshr_b32 s{s_b}, s{s_t}, 2")
    E(f"    s_and_b32 s{s_t}, s{s_t}, 3")
    E(f"    s_lshl_b32 s{s_t}, s{s_t}, 1")
    E(f"    s_and_b32 s{s_t+2}, s{s_t+1}, 1")
    E(f"    s_or_b32 s{s_ct}, s{s_t}, s{s_t+2}")
    E(f"    s_lshr_b32 s{s_rt}, s{s_t+1}, 1")
    E(f"    s_lshl_b32 s{s_l0}, s{s_rt}, 7")
    E(f"    s_lshl_b32 s{s_n0}, s{s_ct}, 5")
    E("    s_waitcnt lgkmcnt(0)")
    def srd(d, lo, size):
        E(f"    s_mov_b32 s{d}, s{lo}")
        E(f"    s_mov_b32 s{d+1}, s{lo+1}")
        E(f"    s_mov_b32 s{d+2}, {size}")
        E(f"    s_mov_b32 s{d+3}, 0x00020000")
    srd(S_G, 4, 512)
    srd(S_BE, 6, 512)
    srd(S_O2, 10, O_BYTES)
    srd(S_WS2, 12, WS_STATS_BYTES)
    E("    v_lshrrev_b32 v4, 2, v0")
    E(f"    v_add_u32 v4, s{s_l0}, v4")
    E(f"    s_mul_i32 s{s_t}, s{s_b}, {L_}")
    E(f"    v_add_u32 v5, s{s_t}, v4")
    E("    v_lshlrev_b32 v5, 9, v5")
    E("    v_and_b32 v6, 3, v0")
    E("    v_lshlrev_b32 v7, 4, v6")
    E("    v_add_u32 v5, v5, v7")
    E(f"    s_lshl_b32 s{s_t}, s{s_n0}, 1")
    E(f"    v_add_u32 v5, s{s_t}, v5")
    E(f"    s_lshl_b32 s{s_t}, s{s_b}, 4")
    E(f"    v_lshlrev_b32 v8, 3, v3")
    E(f"    v_add_u32 v8, s{s_t}, v8")
    E("    v_lshlrev_b32 v8, 8, v8")
    E(f"    v_add_u32 v8, s{s_n0}, v8")
    E("    v_add_u32 v8, v8, v2")
    E("    v_lshlrev_b32 v8, 3, v8")
    ST = 64
    for t in range(8):
        if t % 2 == 0:
            E(f"    s_mov_b32 s{s_t+4}, {(t//2)*4096}")
        E(f"    buffer_load_dwordx2 v[{ST+2*t}:{ST+2*t+1}], v8, s[{S_WS2}:{S_WS2+3}], s{s_t+4} offen offset:{(t%2)*2048}")
    E(f"    v_lshlrev_b32 v9, 4, v6")
    E(f"    v_add_u32 v9, s{s_t}, v9") if False else None
    E(f"    s_lshl_b32 s{s_t+1}, s{s_n0}, 1")
    E(f"    v_add_u32 v9, s{s_t+1}, v9")
    E(f"    buffer_load_dwordx4 v[12:15], v9, s[{S_G}:{S_G+3}], 0 offen")
    E(f"    buffer_load_dwordx4 v[16:19], v9, s[{S_BE}:{S_BE+3}], 0 offen")
    E(f"    v_cmp_gt_u32 vcc, {L_}, v4")
    E(f"    s_and_saveexec_b64 s[{s_t+2}:{s_t+3}], vcc")
    E("    s_cbranch_execz L2_noload")
    E(f"    buffer_load_dwordx4 v[20:23], v5, s[{S_O2}:{S_O2+3}], 0 offen")
    E("L2_noload:")
    E(f"    s_mov_b64 exec, s[{s_t+2}:{s_t+3}]")
    E("    s_waitcnt vmcnt(0)")
    E("    v_mov_b32 v10, 0x43000000")
    E("    v_cmp_eq_u32 vcc, 1, v3")
    E("    s_nop 1")
    E(f"    v_cndmask_b32 v11, v10, 1.0, vcc") if False else None
    E("    v_mov_b32 v24, 0x42820000")
    E("    v_cndmask_b32 v11, v10, v24, vcc")
    E(f"    v_add_f32 v25, v{ST}, v{ST+2}")
    for t in range(2, 7):
        E(f"    v_add_f32 v25, v25, v{ST+2*t}")
    E("    v_mul_f32 v25, v25, v10")
    E(f"    v_fma_f32 v25, v{ST+14}, v11, v25")
    def xhalf(v, t):
        E(f"    v_mov_b32 v{t}, v{v}")
        E("    s_nop 1")
        E(f"    v_permlane32_swap_b32 v{v}, v{t}")
        E("    s_nop 1")
        E(f"    v_add_f32 v{v}, v{v}, v{t}")
    xhalf(25, 26)
    inv_L = 1.0 / L_
    import struct
    def f32(x):
        return "0x%08x" % struct.unpack("<I", struct.pack("<f", x))[0]
    E(f"    v_mul_f32 v25, {f32(inv_L)}, v25")
    E("    v_mov_b32 v27, 0")
    for t in range(8):
        E(f"    v_sub_f32 v26, v{ST+2*t}, v25")
        E("    v_mul_f32 v26, v26, v26")
        E(f"    v_fma_f32 v26, v26, v{'11' if t == 7 else '10'}, v{ST+2*t+1}")
        E("    v_add_f32 v27, v27, v26")
    xhalf(27, 26)
    E(f"    v_mul_f32 v27, {f32(inv_L)}, v27")
    E("    v_cvt_pk_bf16_f32 v26, v25, v25")
    E("    v_lshlrev_b32 v26, 16, v26")
    E("    v_sub_f32 v28, v25, v26")
    E("    v_fma_f32 v27, v28, v28, v27")
    E("    v_cvt_pk_bf16_f32 v27, v27, v27")
    E("    v_lshlrev_b32 v27, 16, v27")
    E(f"    v_add_f32 v27, {f32(1e-5)}, v27")
    E("    v_cvt_pk_bf16_f32 v27, v27, v27")
    E("    v_lshlrev_b32 v27, 16, v27")
    E("    v_sqrt_f32 v27, v27")
    E("    s_nop 0")
    E("    v_cvt_pk_bf16_f32 v27, v27, v27")
    E("    v_lshlrev_b32 v27, 16, v27")
    E("    v_rcp_f32 v28, v27")
    E("    s_nop 0")
    E(f"    s_lshl_b32 s{s_t}, s{s_wave}, 8")
    E("    v_lshlrev_b32 v29, 3, v2")
    E(f"    v_add_u32 v29, s{s_t}, v29")
    E("    v_mov_b32 v30, v26")
    E("    v_mov_b32 v31, v28")
    E("    ds_write_b64 v29, v[30:31]")
    E("    v_lshlrev_b32 v29, 6, v6")
    E(f"    v_add_u32 v29, s{s_t}, v29")
    E("    s_waitcnt lgkmcnt(0)")
    PR = 32
    for q in range(4):
        E(f"    ds_read_b128 v[{PR+4*q}:{PR+4*q+3}], v29 offset:{16*q}")
    E("    s_waitcnt lgkmcnt(0)")
    k1 = 0.044715
    c0 = -2.0 * 1.4426950408889634 * 0.7978845608028654
    X = 48
    for i in range(4):
        E(f"    v_lshlrev_b32 v{X+2*i}, 16, v{20+i}")
        E(f"    v_and_b32 v{X+2*i+1}, 0xffff0000, v{20+i}")
    def round8():
        for i in range(4):
            E(f"    v_cvt_pk_bf16_f32 v{56+i}, v{X+2*i}, v{X+2*i+1}")
        for i in range(4):
            E(f"    v_lshlrev_b32 v{X+2*i}, 16, v{56+i}")
            E(f"    v_and_b32 v{X+2*i+1}, 0xffff0000, v{56+i}")
    for c in range(8):
        E(f"    v_sub_f32 v{X+c}, v{X+c}, v{PR+2*c}")
    round8()
    for c in range(8):
        E(f"    v_mul_f32 v{X+c}, v{X+c}, v{PR+2*c+1}")
    round8()
    for i in range(4):
        E(f"    v_lshlrev_b32 v{60}, 16, v{12+i}")
        E(f"    v_and_b32 v{61}, 0xffff0000, v{12+i}")
        E(f"    v_mul_f32 v{X+2*i}, v{X+2*i}, v60")
        E(f"    v_mul_f32 v{X+2*i+1}, v{X+2*i+1}, v61")
    round8()
    for i in range(4):
        E(f"    v_lshlrev_b32 v{60}, 16, v{16+i}")
        E(f"    v_and_b32 v{61}, 0xffff0000, v{16+i}")
        E(f"    v_add_f32 v{X+2*i}, v{X+2*i}, v60")
        E(f"    v_add_f32 v{X+2*i+1}, v{X+2*i+1}, v61")
    round8()
    E(f"    v_mov_b32 v62, {f32(c0*k1)}")
    E(f"    v_mov_b32 v63, {f32(c0)}")
    for c in range(8):
        E(f"    v_mul_f32 v{64+c}, v{X+c}, v{X+c}")
        E(f"    v_fma_f32 v{64+c}, v{64+c}, v62, v63")
        E(f"    v_mul_f32 v{64+c}, v{64+c}, v{X+c}")
    for c in range(8):
        E(f"    v_exp_f32 v{64+c}, v{64+c}")
    E("    s_nop 0")
    for c in range(8):
        E(f"    v_add_f32 v{64+c}, 1.0, v{64+c}")
    for c in range(8):
        E(f"    v_rcp_f32 v{64+c}, v{64+c}")
    E("    s_nop 0")
    for c in range(8):
        E(f"    v_mul_f32 v{X+c}, v{X+c}, v{64+c}")
    for i in range(4):
        E(f"    v_cvt_pk_bf16_f32 v{56+i}, v{X+2*i}, v{X+2*i+1}")
    E(f"    v_cmp_gt_u32 vcc, {L_}, v4")
    E(f"    s_and_saveexec_b64 s[{s_t+2}:{s_t+3}], vcc")
    E("    s_cbranch_execz L2_end")
    E(f"    buffer_store_dwordx4 v[56:59], v5, s[{S_O2}:{S_O2+3}], 0 offen")
    E("L2_end:")
    E("    s_endpgm")


def main():
    hdr = open("standalone__self_sup_conv_stem_hubert__speech.s.ref").read().split("\n")
    for h in hdr[:10]:
        E(h)
    E(f"; @launch kernel=conv_kernel grid=(256,1,1) block=(512,1,1) lds={LDS1}")
    E("; @launch kernel=norm_kernel grid=(256,1,1) block=(512,1,1) lds=2048")
    E('.amdgcn_target "amdgcn-amd-amdhsa--gfx950"')
    E(".text")
    gen_conv()
    gen_norm()
    E('.section .rodata,"a"')
    for name in ("conv_kernel", "norm_kernel"):
        E(".p2align 6")
        E(f".amdhsa_kernel {name}")
        E("  .amdhsa_next_free_vgpr 256")
        E("  .amdhsa_next_free_sgpr 102")
        E("  .amdhsa_accum_offset 256")
        E("  .amdhsa_group_segment_fixed_size 0")
        E("  .amdhsa_kernarg_size 64")
        E("  .amdhsa_user_sgpr_count 2")
        E("  .amdhsa_user_sgpr_kernarg_segment_ptr 1")
        E("  .amdhsa_system_sgpr_workgroup_id_x 1")
        E(".end_amdhsa_kernel")
    open(OUT, "w").write("\n".join(lines) + "\n")
    print("wrote", OUT, len(lines), "lines")


if __name__ == "__main__":
    main()
```

```python
import sys, re

OUT = "standalone__self_sup_conv_stem_hubert__speech.s"

B_, T_, D_, K_ = 2, 4000, 256, 31
L_ = (T_ - K_) // 2 + 1
X_BYTES = B_ * T_ * D_ * 2
W_BYTES = K_ * D_ * D_ * 2
O_BYTES = B_ * L_ * D_ * 2
NRT = 16
WS_STATS_BYTES = B_ * NRT * D_ * 8

XB_SIZE = 40960
PLANE = 20480
RING = 8
WRING0 = 2 * XB_SIZE
LDS1 = WRING0 + 8 * RING * 1024

lines = []
def E(s=""):
    m = re.search(r"buffer_\S+ .*offset:(\d+)", s)
    assert not m or int(m.group(1)) < 4096, s
    m = re.search(r"ds_\S+ .*offset:(\d+)", s)
    assert not m or int(m.group(1)) < 65536, s
    lines.append(s)

S_X, S_W, S_O, S_WSR, S_BI = 16, 20, 24, 28, 32
s_wave = 36
s_b, s_rt, s_ct = 37, 38, 39
s_wchunk = 40
s_wring = 41
s_xb0, s_xb1 = 42, 43
s_xbn = 44
s_x5w = 45
s_xlds = 46
s_xoff = 48
s_cc = 53
s_tmp = 54
s_tmp2 = 55
s_l0 = 56
s_n0 = 57
s_t = 58
v_lane, v_m, v_g = 1, 2, 3
v_Aa, v_Ab, v_At, v_Ak = 4, 5, 6, 7
v_Bl, v_Wl, v_X0, v_X1 = 8, 9, 10, 11
v_bias = 12
v_tmp = 13
ACC = 64
FA = [128, 148]
FB = [144, 164]


import os
PFMODE = int(os.environ.get("PFMODE", "1"))
DIAG = len(sys.argv) > 1 and sys.argv[1] == "diag"
if DIAG:
    OUT = "diag.s"
s_stamp = 70
stamp_n = [0]
def stamp(real=False):
    if not DIAG:
        return
    i = stamp_n[0]; stamp_n[0] += 1
    E(f"    s_memrealtime s[{s_stamp+2*i}:{s_stamp+2*i+1}]" if real else f"    s_memtime s[{s_stamp+2*i}:{s_stamp+2*i+1}]")
    E("    s_waitcnt lgkmcnt(0)")

class VM:
    def __init__(self):
        self.ops = []
    def issue(self, tag):
        self.ops.append(tag)
    def need(self, tags):
        last = -1
        for i, t in enumerate(self.ops):
            if t in tags:
                last = i
        assert last >= 0, tags
        return len(self.ops) - 1 - last


def gen_conv():
    E(".globl conv_kernel")
    E(".p2align 8")
    E(".type conv_kernel,@function")
    E("conv_kernel:")
    E("    s_cmp_ge_u32 s2, 256")
    E("    s_cbranch_scc1 L1_end")
    stamp(True)
    stamp()
    E("    s_load_dwordx4 s[4:7], s[0:1], 0")
    E("    s_load_dwordx2 s[8:9], s[0:1], 16")
    E("    s_load_dwordx2 s[10:11], s[0:1], 40")
    E("    s_load_dwordx2 s[12:13], s[0:1], 56")
    E(f"    v_and_b32 v{v_lane}, 63, v0")
    E(f"    v_lshrrev_b32 v{v_tmp}, 6, v0")
    E(f"    v_and_b32 v{v_m}, 31, v0")
    E(f"    v_lshrrev_b32 v{v_g}, 5, v{v_lane}")
    E(f"    v_readfirstlane_b32 s{s_wave}, v{v_tmp}")
    E(f"    s_and_b32 s{s_t}, s2, 7")
    E(f"    s_lshr_b32 s{s_t+1}, s2, 3")
    E(f"    s_lshr_b32 s{s_b}, s{s_t}, 2")
    E(f"    s_and_b32 s{s_t}, s{s_t}, 3")
    E(f"    s_lshl_b32 s{s_t}, s{s_t}, 1")
    E(f"    s_and_b32 s{s_t+2}, s{s_t+1}, 1")
    E(f"    s_or_b32 s{s_ct}, s{s_t}, s{s_t+2}")
    E(f"    s_lshr_b32 s{s_rt}, s{s_t+1}, 1")
    E(f"    s_lshl_b32 s{s_l0}, s{s_rt}, 7")
    E(f"    s_lshl_b32 s{s_n0}, s{s_ct}, 5")
    E("    s_waitcnt lgkmcnt(0)")
    def srd(d, lo, size):
        E(f"    s_mov_b32 s{d}, s{lo}")
        E(f"    s_mov_b32 s{d+1}, s{lo+1}")
        E(f"    s_mov_b32 s{d+2}, {size}")
        E(f"    s_mov_b32 s{d+3}, 0x00020000")
    srd(S_X, 4, X_BYTES)
    srd(S_W, 6, W_BYTES)
    srd(S_BI, 8, 512)
    srd(S_O, 10, O_BYTES)
    srd(S_WSR, 12, WS_STATS_BYTES)
    E(f"    s_cmp_eq_u32 s{s_wave}, 8")
    E("    s_cbranch_scc1 L1_pf")
    vm = VM()
    E(f"    v_add_u32 v{v_tmp}, s{s_n0}, v{v_m}")
    E(f"    v_lshlrev_b32 v{v_tmp}, 1, v{v_tmp}")
    E(f"    buffer_load_ushort v{v_bias}, v{v_tmp}, s[{S_BI}:{S_BI+3}], 0 offen")
    vm.issue("bias")
    E(f"    v_lshrrev_b32 v{v_tmp}, 3, v{v_lane}")
    E(f"    v_and_b32 v{v_tmp+1}, 7, v{v_lane}")
    E(f"    v_lshrrev_b32 v{v_tmp+2}, 1, v{v_tmp}")
    E(f"    v_xor_b32 v{v_tmp+1}, v{v_tmp+1}, v{v_tmp+2}")
    E(f"    v_lshlrev_b32 v{v_tmp+1}, 4, v{v_tmp+1}")
    E(f"    v_lshlrev_b32 v{v_tmp}, 10, v{v_tmp}")
    E(f"    v_or_b32 v{v_tmp}, v{v_tmp}, v{v_tmp+1}")
    E(f"    s_and_b32 s{s_t}, s{s_wave}, 1")
    E(f"    s_lshl_b32 s{s_t}, s{s_t}, 6")
    E(f"    v_xor_b32 v{v_X0}, s{s_t}, v{v_tmp}")
    E(f"    v_xor_b32 v{v_X1}, 64, v{v_X0}")
    E(f"    s_mul_i32 s{s_t}, s{s_b}, {T_}")
    E(f"    s_lshl_b32 s{s_t+1}, s{s_rt}, 8")
    E(f"    s_add_u32 s{s_t}, s{s_t}, s{s_t+1}")
    E(f"    s_mul_i32 s{s_t+1}, s{s_wave}, 5")
    for i in range(5):
        E(f"    s_add_u32 s{s_t+2}, s{s_t+1}, {i}")
        E(f"    s_cmp_ge_u32 s{s_t+2}, 20")
        E(f"    s_cselect_b32 s{s_t+3}, 1, 0")
        E(f"    s_cselect_b32 s{s_t+4}, 20, 0")
        E(f"    s_sub_u32 s{s_t+2}, s{s_t+2}, s{s_t+4}")
        E(f"    s_lshl_b32 s{s_t+2}, s{s_t+2}, 4")
        E(f"    s_add_u32 s{s_t+2}, s{s_t+2}, s{s_t+3}")
        E(f"    s_add_u32 s{s_t+2}, s{s_t+2}, s{s_t}")
        E(f"    s_lshl_b32 s{s_xoff+i}, s{s_t+2}, 9")
    E(f"    s_lshl_b32 s{s_x5w}, s{s_t+1}, 10")
    for i in range(5):
        E(f"    s_add_u32 m0, s{s_x5w}, {i*1024}")
        E(f"    s_nop 0")
        vx = v_X0 if i % 2 == 0 else v_X1
        E(f"    buffer_load_dwordx4 v{vx}, s[{S_X}:{S_X+3}], s{s_xoff+i} offen lds")
        vm.issue("x0")
    for i in range(5):
        E(f"    s_add_u32 s{s_xoff+i}, s{s_xoff+i}, 128")
    E(f"    v_lshrrev_b32 v{v_tmp}, 2, v{v_lane}")
    E(f"    v_lshlrev_b32 v{v_tmp}, 9, v{v_tmp}")
    E(f"    v_and_b32 v{v_tmp+1}, 3, v{v_lane}")
    E(f"    v_lshlrev_b32 v{v_tmp+1}, 4, v{v_tmp+1}")
    E(f"    v_or_b32 v{v_Wl}, v{v_tmp}, v{v_tmp+1}")
    E(f"    s_lshl_b32 s{s_wchunk}, s{s_wave}, 19")
    E(f"    s_lshl_b32 s{s_t}, s{s_n0}, 1")
    E(f"    s_add_u32 s{s_wchunk}, s{s_wchunk}, s{s_t}")
    E(f"    s_lshl_b32 s{s_wring}, s{s_wave}, 13")
    E(f"    s_add_u32 s{s_wring}, s{s_wring}, {WRING0}")

    def wconst(s):
        c, ss = divmod(s, 16)
        j, ks = divmod(ss, 4)
        return j * 131072 + ks * 8192 + c * 32768
    for s in range(7):
        E(f"    s_add_u32 m0, s{s_wring}, {s*1024}")
        E(f"    s_add_u32 s{s_tmp}, s{s_wchunk}, {wconst(s)}")
        E(f"    buffer_load_dwordx4 v{v_Wl}, s[{S_W}:{S_W+3}], s{s_tmp} offen lds")
        vm.issue(("w", 0, s))
    E(f"    s_lshl_b32 s{s_t}, s{s_wave}, 1")
    for which, dst in ((0, v_Aa), (1, v_Ab)):
        E(f"    v_add_u32 v{v_tmp}, s{s_t}, v{v_m}")
        if which:
            E(f"    v_add_u32 v{v_tmp}, 1, v{v_tmp}")
        E(f"    v_lshrrev_b32 v{v_tmp+1}, 1, v{v_tmp}")
        E(f"    v_and_b32 v{v_tmp+1}, 7, v{v_tmp+1}")
        E(f"    v_xor_b32 v{v_tmp+1}, v{v_g}, v{v_tmp+1}")
        E(f"    v_lshlrev_b32 v{v_tmp+1}, 4, v{v_tmp+1}")
        E(f"    v_lshlrev_b32 v{v_tmp}, 7, v{v_tmp}")
        E(f"    v_or_b32 v{dst}, v{v_tmp}, v{v_tmp+1}")
    E(f"    v_and_b32 v{v_tmp}, 15, v{v_lane}")
    E(f"    v_lshrrev_b32 v{v_tmp+1}, 2, v{v_tmp}")
    E(f"    v_and_b32 v{v_tmp+2}, 3, v{v_tmp}")
    E(f"    v_lshlrev_b32 v{v_tmp+3}, 3, v{v_g}")
    E(f"    v_add_u32 v{v_tmp+3}, v{v_tmp+3}, v{v_tmp+1}")
    E(f"    v_lshlrev_b32 v{v_tmp+3}, 6, v{v_tmp+3}")
    E(f"    v_lshrrev_b32 v{v_tmp+1}, 4, v{v_lane}")
    E(f"    v_and_b32 v{v_tmp+1}, 1, v{v_tmp+1}")
    E(f"    v_lshlrev_b32 v{v_tmp+1}, 5, v{v_tmp+1}")
    E(f"    v_add_u32 v{v_tmp+3}, v{v_tmp+3}, v{v_tmp+1}")
    E(f"    v_lshlrev_b32 v{v_tmp+2}, 3, v{v_tmp+2}")
    E(f"    v_add_u32 v{v_tmp+3}, v{v_tmp+3}, v{v_tmp+2}")
    E(f"    v_add_u32 v{v_Bl}, s{s_wring}, v{v_tmp+3}")
    for r in range(64):
        E(f"    v_mov_b32 v{ACC+r}, 0")
    E(f"    s_mov_b32 s{s_xb0}, 0")
    E(f"    s_mov_b32 s{s_xb1}, {PLANE}")
    E(f"    s_mov_b32 s{s_xbn}, {XB_SIZE}")
    E(f"    s_add_u32 s{s_xlds}, s{s_xbn}, s{s_x5w}")
    E(f"    s_mov_b32 s{s_cc}, 0")
    E(f"    s_cmp_eq_u32 s{s_wave}, 7")
    E(f"    s_cselect_b64 vcc, -1, 0")

    def reads(sn, st):
        j, ks = divmod(sn, 4)
        slot = sn % RING
        E(f"    ds_read_b64_tr_b16 v[{FB[st]}:{FB[st]+1}], v{v_Bl} offset:{slot*1024}")
        E(f"    ds_read_b64_tr_b16 v[{FB[st]+2}:{FB[st]+3}], v{v_Bl} offset:{slot*1024+256}")
        if ks == 0:
            E(f"    v_add_u32 v{v_At}, s{s_xb1 if (j & 1) else s_xb0}, v{v_Ab if (j >> 1) else v_Aa}")
            av = v_At
        else:
            E(f"    v_xor_b32 v{v_Ak}, {32*ks}, v{v_At}")
            av = v_Ak
        for f in range(4):
            E(f"    ds_read_b128 v[{FA[st]+4*f}:{FA[st]+4*f+3}], v{av} offset:{f*4096}")

    E(f"    s_waitcnt vmcnt({vm.need({'x0'})})")
    E("    s_barrier")
    stamp()
    E(f"    s_waitcnt vmcnt({vm.need({('w',0,0)})})")
    reads(0, 0)

    def body(emit, vm, it, Ns):
        out = []
        def e(s):
            out.append(s)
        for s in range(16):
            cur, nxt = s % 2, 1 - s % 2
            sn = (s + 1) % 16
            def mfma(f):
                if s >= 12:
                    e(f"    s_cbranch_vccnz L1_skip_{s}_{f}")
                e(f"    v_mfma_f32_32x32x16_bf16 v[{ACC+16*f}:{ACC+16*f+15}], v[{FA[cur]+4*f}:{FA[cur]+4*f+3}], v[{FB[cur]}:{FB[cur]+3}], v[{ACC+16*f}:{ACC+16*f+15}]")
                if s >= 12:
                    e(f"L1_skip_{s}_{f}:")
            e(f"    ; ---- step {s}")
            e("    s_waitcnt lgkmcnt(0)")
            mfma(0)
            if s == 15:
                n = vm.need({("x", it + 1)})
                key = ("xwait",)
                Ns[key] = min(Ns.get(key, 63), n)
                e(f"    s_waitcnt vmcnt({Ns[key]})")
                e("    s_barrier")
                e(f"    s_xor_b32 s{s_xb0}, s{s_xb0}, {XB_SIZE}")
                e(f"    s_xor_b32 s{s_xb1}, s{s_xb1}, {XB_SIZE}")
                e(f"    s_xor_b32 s{s_xbn}, s{s_xbn}, {XB_SIZE}")
                e(f"    s_add_u32 s{s_xlds}, s{s_xbn}, s{s_x5w}")
            gs = it * 16 + s + 1
            n = vm.need({("w", gs // 16, gs % 16)})
            key = ("wwait", s)
            Ns[key] = min(Ns.get(key, 63), n)
            e(f"    s_waitcnt vmcnt({Ns[key]})")
            j, ks = divmod(sn, 4)
            slot = sn % RING
            e(f"    ds_read_b64_tr_b16 v[{FB[nxt]}:{FB[nxt]+1}], v{v_Bl} offset:{slot*1024}")
            e(f"    ds_read_b64_tr_b16 v[{FB[nxt]+2}:{FB[nxt]+3}], v{v_Bl} offset:{slot*1024+256}")
            if ks == 0:
                e(f"    v_add_u32 v{v_At}, s{s_xb1 if (j & 1) else s_xb0}, v{v_Ab if (j >> 1) else v_Aa}")
                av = v_At
            else:
                e(f"    v_xor_b32 v{v_Ak}, {32*ks}, v{v_At}")
                av = v_Ak
            for f in range(4):
                e(f"    ds_read_b128 v[{FA[nxt]+4*f}:{FA[nxt]+4*f+3}], v{av} offset:{f*4096}")
            mfma(1)
            e(f"    s_add_u32 m0, s{s_wring}, {((s+7) % RING)*1024}")
            e(f"    s_add_u32 s{s_tmp}, s{s_wchunk}, {wconst(s+7)}")
            e(f"    buffer_load_dwordx4 v{v_Wl}, s[{S_W}:{S_W+3}], s{s_tmp} offen lds")
            g7 = it * 16 + s + 7
            vm.issue(("w", g7 // 16, g7 % 16))
            mfma(2)
            if s in (0, 2, 4, 6, 8):
                i = s // 2
                e(f"    s_add_u32 m0, s{s_xlds}, {i*1024}")
                e(f"    s_nop 0")
                vx = v_X0 if i % 2 == 0 else v_X1
                e(f"    buffer_load_dwordx4 v{vx}, s[{S_X}:{S_X+3}], s{s_xoff+i} offen lds")
                vm.issue(("x", it + 1))
            mfma(3)
        e(f"    s_add_u32 s{s_wchunk}, s{s_wchunk}, 32768")
        for i in range(5):
            e(f"    s_add_u32 s{s_xoff+i}, s{s_xoff+i}, 128")
        return out

    import copy
    Ns = {}
    vms = copy.deepcopy(vm)
    for it in range(4):
        body(False, vms, it, Ns)
    vms = copy.deepcopy(vm)
    for it in range(4):
        body(False, vms, it, Ns)
    vms = copy.deepcopy(vm)
    text = body(True, vms, 0, Ns)
    E("L1_loop:")
    for t in text:
        E(t)
    E(f"    s_add_u32 s{s_cc}, s{s_cc}, 1")
    E(f"    s_cmp_lt_u32 s{s_cc}, 4")
    E("    s_cbranch_scc1 L1_loop")
    stamp()

    E("    s_waitcnt vmcnt(0) lgkmcnt(0)")
    E("    s_nop 15")
    E("    s_nop 7")
    E("    s_barrier")
    stamp()
    E(f"    s_lshl_b32 s{s_t}, s{s_wave}, 14")
    E(f"    v_lshlrev_b32 v{v_tmp}, 4, v{v_lane}")
    E(f"    v_add_u32 v{v_tmp+1}, s{s_t}, v{v_tmp}")
    for rg in range(16):
        E(f"    ds_write_b128 v{v_tmp+1}, v[{ACC+4*rg}:{ACC+4*rg+3}] offset:{rg*1024}")
    E("    s_waitcnt lgkmcnt(0)")
    E("    s_barrier")
    stamp()
    E(f"    s_lshl_b32 s{s_t}, s{s_wave}, 11")
    E(f"    v_add_u32 v{v_tmp+1}, s{s_t}, v{v_tmp}")
    E(f"    v_add_u32 v{v_tmp+2}, 0x10000, v{v_tmp+1}")
    P0 = 64
    for sw in range(8):
        base = v_tmp + 1 if sw < 4 else v_tmp + 2
        off = (sw % 4) * 16384
        E(f"    ds_read_b128 v[{P0+8*sw}:{P0+8*sw+3}], v{base} offset:{off}")
        E(f"    ds_read_b128 v[{P0+8*sw+4}:{P0+8*sw+7}], v{base} offset:{off+1024}")
    E("    s_waitcnt lgkmcnt(0)")
    Y = 32
    for i in range(8):
        E(f"    v_add_f32 v{Y+i}, v{P0+i}, v{P0+8+i}")
    for sw in range(2, 8):
        for i in range(8):
            E(f"    v_add_f32 v{Y+i}, v{Y+i}, v{P0+8*sw+i}")
    E(f"    v_lshlrev_b32 v{v_bias}, 16, v{v_bias}")
    PK = 40
    def round8(src, dst):
        for i in range(4):
            E(f"    v_cvt_pk_bf16_f32 v{PK+i}, v{src+2*i}, v{src+2*i+1}")
        for i in range(4):
            E(f"    v_lshlrev_b32 v{dst+2*i}, 16, v{PK+i}")
            E(f"    v_and_b32 v{dst+2*i+1}, 0xffff0000, v{PK+i}")
    round8(Y, Y)
    for i in range(8):
        E(f"    v_add_f32 v{Y+i}, v{Y+i}, v{v_bias}")
    round8(Y, Y)
    E(f"    s_lshl_b32 s{s_t}, s{s_wave}, 10")
    E(f"    s_add_u32 s{s_t}, s{s_t}, 131072")
    E(f"    v_lshlrev_b32 v{v_tmp}, 8, v{v_g}")
    E(f"    v_lshlrev_b32 v{v_tmp+1}, 1, v{v_m}")
    E(f"    v_add_u32 v{v_tmp}, v{v_tmp}, v{v_tmp+1}")
    E(f"    v_add_u32 v{v_tmp}, s{s_t}, v{v_tmp}")
    for p in range(4):
        r0 = 8 * (p // 2) + 2 * (p % 2)
        E(f"    ds_write_b16 v{v_tmp}, v{PK+p} offset:{r0*64}")
        E(f"    ds_write_b16_d16_hi v{v_tmp}, v{PK+p} offset:{(r0+1)*64}")
    E(f"    v_lshlrev_b32 v{v_tmp+1}, 4, v{v_lane}")
    E(f"    v_add_u32 v{v_tmp+1}, s{s_t}, v{v_tmp+1}")
    E("    s_waitcnt lgkmcnt(0)")
    E(f"    ds_read_b128 v[44:47], v{v_tmp+1}")
    E(f"    s_lshl_b32 s{s_t}, s{s_wave}, 4")
    E(f"    s_add_u32 s{s_t}, s{s_t}, s{s_l0}")
    E(f"    v_lshrrev_b32 v{v_tmp+2}, 2, v{v_lane}")
    E(f"    v_add_u32 v{v_tmp+2}, s{s_t}, v{v_tmp+2}")
    E(f"    s_mul_i32 s{s_t+1}, s{s_b}, {L_}")
    E(f"    v_add_u32 v{v_tmp+3}, s{s_t+1}, v{v_tmp+2}")
    E(f"    v_lshlrev_b32 v{v_tmp+3}, 9, v{v_tmp+3}")
    E(f"    v_and_b32 v{v_tmp+4}, 3, v{v_lane}")
    E(f"    v_lshlrev_b32 v{v_tmp+4}, 4, v{v_tmp+4}")
    E(f"    v_add_u32 v{v_tmp+3}, v{v_tmp+3}, v{v_tmp+4}")
    E(f"    s_lshl_b32 s{s_t+1}, s{s_n0}, 1")
    E(f"    v_add_u32 v{v_tmp+3}, s{s_t+1}, v{v_tmp+3}")
    E(f"    v_cmp_gt_u32 vcc, {L_}, v{v_tmp+2}")
    E(f"    s_and_saveexec_b64 s[{s_t+2}:{s_t+3}], vcc")
    E("    s_cbranch_execz L1_nostore")
    E("    s_waitcnt lgkmcnt(0)")
    E(f"    buffer_store_dwordx4 v[44:47], v{v_tmp+3}, s[{S_O}:{S_O+3}], 0 offen")
    E("L1_nostore:")
    E(f"    s_mov_b64 exec, s[{s_t+2}:{s_t+3}]")
    stamp()
    E(f"    s_sub_u32 s{s_t}, {L_}, s{s_t}")
    E(f"    v_lshlrev_b32 v{v_tmp}, 2, v{v_g}")
    E(f"    v_sub_u32 v{v_tmp}, s{s_t}, v{v_tmp}")
    MV = 48
    for i in range(8):
        c = 8 * (i // 4) + i % 4
        E(f"    v_cmp_lt_i32 vcc, {c}, v{v_tmp}")
        E(f"    s_nop 1")
        E(f"    v_cndmask_b32 v{MV+i}, 0, v{Y+i}, vcc")
    E(f"    v_add_f32 v{v_tmp+1}, v{MV}, v{MV+1}")
    for i in range(2, 8):
        E(f"    v_add_f32 v{v_tmp+1}, v{v_tmp+1}, v{MV+i}")
    def xhalf(v, t):
        E(f"    v_mov_b32 v{t}, v{v}")
        E("    s_nop 1")
        E(f"    v_permlane32_swap_b32 v{v}, v{t}")
        E("    s_nop 1")
        E(f"    v_add_f32 v{v}, v{v}, v{t}")
    xhalf(v_tmp + 1, v_tmp + 2)
    ST0 = 131072 + 8192
    E(f"    v_lshlrev_b32 v{v_tmp+3}, 5, v{v_m}")
    E(f"    s_lshl_b32 s{s_t}, s{s_wave}, 2")
    E(f"    s_add_u32 s{s_t}, s{s_t}, {ST0}")
    E(f"    v_add_u32 v{v_tmp+3}, s{s_t}, v{v_tmp+3}")
    E(f"    ds_write_b32 v{v_tmp+3}, v{v_tmp+1}")
    E("    s_waitcnt lgkmcnt(0)")
    E("    s_barrier")
    E(f"    v_lshlrev_b32 v{v_tmp+4}, 5, v{v_m}")
    E(f"    v_add_u32 v{v_tmp+4}, {ST0}, v{v_tmp+4}")
    E(f"    ds_read_b128 v[56:59], v{v_tmp+4}")
    E(f"    ds_read_b128 v[60:63], v{v_tmp+4} offset:16")
    E("    s_waitcnt lgkmcnt(0)")
    E(f"    v_add_f32 v{v_tmp+5}, v56, v57")
    for r in range(58, 64):
        E(f"    v_add_f32 v{v_tmp+5}, v{v_tmp+5}, v{r}")
    E(f"    s_sub_u32 s{s_t}, {L_}, s{s_l0}")
    E(f"    s_min_u32 s{s_t}, s{s_t}, 128")
    E(f"    v_cvt_f32_u32 v{v_tmp+6}, s{s_t}")
    E(f"    v_rcp_f32 v{v_tmp+6}, v{v_tmp+6}")
    E("    s_nop 0")
    E(f"    v_mul_f32 v{v_tmp+5}, v{v_tmp+5}, v{v_tmp+6}")
    for i in range(8):
        c = 8 * (i // 4) + i % 4
        E(f"    v_sub_f32 v{MV+i}, v{Y+i}, v{v_tmp+5}")
        E(f"    v_cmp_lt_i32 vcc, {c}, v{v_tmp}")
        E(f"    s_nop 1")
        E(f"    v_cndmask_b32 v{MV+i}, 0, v{MV+i}, vcc")
    E(f"    v_mul_f32 v{v_tmp+1}, v{MV}, v{MV}")
    for i in range(1, 8):
        E(f"    v_fma_f32 v{v_tmp+1}, v{MV+i}, v{MV+i}, v{v_tmp+1}")
    xhalf(v_tmp + 1, v_tmp + 2)
    E(f"    ds_write_b32 v{v_tmp+3}, v{v_tmp+1} offset:1024")
    E("    s_waitcnt lgkmcnt(0)")
    E("    s_barrier")
    E(f"    s_cmp_lg_u32 s{s_wave}, 0")
    E("    s_cbranch_scc1 L1_end")
    E(f"    ds_read_b128 v[56:59], v{v_tmp+4} offset:1024")
    E(f"    ds_read_b128 v[60:63], v{v_tmp+4} offset:1040")
    E("    s_waitcnt lgkmcnt(0)")
    E(f"    v_add_f32 v{v_tmp+6}, v56, v57")
    for r in range(58, 64):
        E(f"    v_add_f32 v{v_tmp+6}, v{v_tmp+6}, v{r}")
    E(f"    s_lshl_b32 s{s_t}, s{s_b}, 4")
    E(f"    s_add_u32 s{s_t}, s{s_t}, s{s_rt}")
    E(f"    s_lshl_b32 s{s_t}, s{s_t}, 8")
    E(f"    s_add_u32 s{s_t}, s{s_t}, s{s_n0}")
    E(f"    v_add_u32 v{v_tmp+7}, s{s_t}, v{v_m}")
    E(f"    v_lshlrev_b32 v{v_tmp+7}, 3, v{v_tmp+7}")
    E(f"    v_mov_b32 v56, v{v_tmp+5}")
    E(f"    v_mov_b32 v57, v{v_tmp+6}")
    E(f"    v_cmp_gt_u32 vcc, 32, v{v_lane}")
    E(f"    s_and_saveexec_b64 s[{s_t+2}:{s_t+3}], vcc")
    E(f"    buffer_store_dwordx2 v[56:57], v{v_tmp+7}, s[{S_WSR}:{S_WSR+3}], 0 offen")
    if DIAG:
        stamp()
        stamp(True)
        E("    s_load_dwordx2 s[4:5], s[0:1], 56")
        E("    s_waitcnt lgkmcnt(0)")
        E("    s_add_u32 s4, s4, 0x100000")
        E("    s_addc_u32 s5, s5, 0")
        E("    s_mov_b32 s6, 65536")
        E("    s_mov_b32 s7, 0x00020000")
        E("    s_lshl_b32 s8, s2, 6")
        E("    v_mov_b32 v1, s8")
        for i in range(stamp_n[0]):
            E(f"    v_mov_b32 v2, s{s_stamp+2*i}")
            E(f"    buffer_store_dword v2, v1, s[4:7], 0 offen offset:{4*i}")
    E("L1_end:")
    E("    s_endpgm")
    E("L1_pf:")
    E(f"    v_lshlrev_b32 v{v_tmp}, 9, v{v_lane}")
    E(f"    s_and_b32 s{s_t}, s{s_ct}, 1")
    E(f"    s_lshl_b32 s{s_t}, s{s_t}, 4")
    E(f"    s_add_u32 s{s_t}, s{s_t}, s{s_rt}")
    E(f"    s_lshl_b32 s{s_t}, s{s_t}, 17")
    E(f"    s_lshl_b32 s{s_t+1}, s{s_n0}, 1")
    E(f"    s_add_u32 s{s_t}, s{s_t}, s{s_t+1}")
    E(f"    v_add_u32 v{v_tmp}, s{s_t}, v{v_tmp}")
    E(f"    s_and_b32 s{s_t}, s{s_ct}, 1")
    E(f"    s_mul_i32 s{s_t}, s{s_t}, 144")
    E(f"    s_mul_i32 s{s_t+1}, s{s_b}, {T_}")
    E(f"    s_add_u32 s{s_t}, s{s_t}, s{s_t+1}")
    E(f"    s_lshl_b32 s{s_t+1}, s{s_rt}, 8")
    E(f"    s_add_u32 s{s_t}, s{s_t}, s{s_t+1}")
    E(f"    v_add_u32 v{v_tmp+1}, s{s_t}, v{v_lane}")
    E(f"    v_lshlrev_b32 v{v_tmp+1}, 9, v{v_tmp+1}")
    PF = 32
    n = 0
    for c in range(4):
        for h in (0,):
            if not PFMODE & 1:
                continue
            E(f"    s_mov_b32 s{s_t}, {c*32768}")
            E(f"    buffer_load_dword v{PF+n}, v{v_tmp}, s[{S_W}:{S_W+3}], s{s_t} offen")
            n += 1
        if c >= 1 and PFMODE & 2:
            for k in range(3):
                E(f"    s_mov_b32 s{s_t}, {c*128 + k*64*512}")
                if k == 2:
                    E("    s_mov_b64 exec, 0xffff")
                E(f"    buffer_load_dword v{PF+n}, v{v_tmp+1}, s[{S_X}:{S_X+3}], s{s_t} offen")
                if k == 2:
                    E("    s_mov_b64 exec, -1")
                n += 1
        if c < 3:
            E("    s_barrier")
    E("    s_waitcnt vmcnt(0)")
    E("    s_endpgm")


def gen_norm():
    S_O2, S_WS2, S_G, S_BE = 16, 20, 24, 28
    s_wave, s_b, s_rt, s_ct, s_l0, s_n0, s_t = 36, 37, 38, 39, 40, 41, 44
    E(".globl norm_kernel")
    E(".p2align 8")
    E(".type norm_kernel,@function")
    E("norm_kernel:")
    E("    s_cmp_ge_u32 s2, 256")
    E("    s_cbranch_scc1 L2_end")
    E("    s_load_dwordx4 s[4:7], s[0:1], 24")
    E("    s_load_dwordx2 s[10:11], s[0:1], 40")
    E("    s_load_dwordx2 s[12:13], s[0:1], 56")
    E("    v_and_b32 v1, 63, v0")
    E("    v_lshrrev_b32 v5, 6, v0")
    E("    v_and_b32 v2, 31, v0")
    E("    v_lshrrev_b32 v3, 5, v1")
    E(f"    v_readfirstlane_b32 s{s_wave}, v5")
    E(f"    s_and_b32 s{s_t}, s2, 7")
    E(f"    s_lshr_b32 s{s_t+1}, s2, 3")
    E(f"    s_lshr_b32 s{s_b}, s{s_t}, 2")
    E(f"    s_and_b32 s{s_t}, s{s_t}, 3")
    E(f"    s_lshl_b32 s{s_t}, s{s_t}, 1")
    E(f"    s_and_b32 s{s_t+2}, s{s_t+1}, 1")
    E(f"    s_or_b32 s{s_ct}, s{s_t}, s{s_t+2}")
    E(f"    s_lshr_b32 s{s_rt}, s{s_t+1}, 1")
    E(f"    s_lshl_b32 s{s_l0}, s{s_rt}, 7")
    E(f"    s_lshl_b32 s{s_n0}, s{s_ct}, 5")
    E("    s_waitcnt lgkmcnt(0)")
    def srd(d, lo, size):
        E(f"    s_mov_b32 s{d}, s{lo}")
        E(f"    s_mov_b32 s{d+1}, s{lo+1}")
        E(f"    s_mov_b32 s{d+2}, {size}")
        E(f"    s_mov_b32 s{d+3}, 0x00020000")
    srd(S_G, 4, 512)
    srd(S_BE, 6, 512)
    srd(S_O2, 10, O_BYTES)
    srd(S_WS2, 12, WS_STATS_BYTES)
    E("    v_lshrrev_b32 v4, 2, v0")
    E(f"    v_add_u32 v4, s{s_l0}, v4")
    E(f"    s_mul_i32 s{s_t}, s{s_b}, {L_}")
    E(f"    v_add_u32 v5, s{s_t}, v4")
    E("    v_lshlrev_b32 v5, 9, v5")
    E("    v_and_b32 v6, 3, v0")
    E("    v_lshlrev_b32 v7, 4, v6")
    E("    v_add_u32 v5, v5, v7")
    E(f"    s_lshl_b32 s{s_t}, s{s_n0}, 1")
    E(f"    v_add_u32 v5, s{s_t}, v5")
    E(f"    s_lshl_b32 s{s_t}, s{s_b}, 4")
    E(f"    v_lshlrev_b32 v8, 3, v3")
    E(f"    v_add_u32 v8, s{s_t}, v8")
    E("    v_lshlrev_b32 v8, 8, v8")
    E(f"    v_add_u32 v8, s{s_n0}, v8")
    E("    v_add_u32 v8, v8, v2")
    E("    v_lshlrev_b32 v8, 3, v8")
    ST = 64
    for t in range(8):
        if t % 2 == 0:
            E(f"    s_mov_b32 s{s_t+4}, {(t//2)*4096}")
        E(f"    buffer_load_dwordx2 v[{ST+2*t}:{ST+2*t+1}], v8, s[{S_WS2}:{S_WS2+3}], s{s_t+4} offen offset:{(t%2)*2048}")
    E(f"    v_lshlrev_b32 v9, 4, v6")
    E(f"    v_add_u32 v9, s{s_t}, v9") if False else None
    E(f"    s_lshl_b32 s{s_t+1}, s{s_n0}, 1")
    E(f"    v_add_u32 v9, s{s_t+1}, v9")
    E(f"    buffer_load_dwordx4 v[12:15], v9, s[{S_G}:{S_G+3}], 0 offen")
    E(f"    buffer_load_dwordx4 v[16:19], v9, s[{S_BE}:{S_BE+3}], 0 offen")
    E(f"    v_cmp_gt_u32 vcc, {L_}, v4")
    E(f"    s_and_saveexec_b64 s[{s_t+2}:{s_t+3}], vcc")
    E("    s_cbranch_execz L2_noload")
    E(f"    buffer_load_dwordx4 v[20:23], v5, s[{S_O2}:{S_O2+3}], 0 offen")
    E("L2_noload:")
    E(f"    s_mov_b64 exec, s[{s_t+2}:{s_t+3}]")
    E("    s_waitcnt vmcnt(0)")
    E("    v_mov_b32 v10, 0x43000000")
    E("    v_cmp_eq_u32 vcc, 1, v3")
    E("    s_nop 1")
    E(f"    v_cndmask_b32 v11, v10, 1.0, vcc") if False else None
    E("    v_mov_b32 v24, 0x42820000")
    E("    v_cndmask_b32 v11, v10, v24, vcc")
    E(f"    v_add_f32 v25, v{ST}, v{ST+2}")
    for t in range(2, 7):
        E(f"    v_add_f32 v25, v25, v{ST+2*t}")
    E("    v_mul_f32 v25, v25, v10")
    E(f"    v_fma_f32 v25, v{ST+14}, v11, v25")
    def xhalf(v, t):
        E(f"    v_mov_b32 v{t}, v{v}")
        E("    s_nop 1")
        E(f"    v_permlane32_swap_b32 v{v}, v{t}")
        E("    s_nop 1")
        E(f"    v_add_f32 v{v}, v{v}, v{t}")
    xhalf(25, 26)
    inv_L = 1.0 / L_
    import struct
    def f32(x):
        return "0x%08x" % struct.unpack("<I", struct.pack("<f", x))[0]
    E(f"    v_mul_f32 v25, {f32(inv_L)}, v25")
    E("    v_mov_b32 v27, 0")
    for t in range(8):
        E(f"    v_sub_f32 v26, v{ST+2*t}, v25")
        E("    v_mul_f32 v26, v26, v26")
        E(f"    v_fma_f32 v26, v26, v{'11' if t == 7 else '10'}, v{ST+2*t+1}")
        E("    v_add_f32 v27, v27, v26")
    xhalf(27, 26)
    E(f"    v_mul_f32 v27, {f32(inv_L)}, v27")
    E("    v_cvt_pk_bf16_f32 v26, v25, v25")
    E("    v_lshlrev_b32 v26, 16, v26")
    E("    v_sub_f32 v28, v25, v26")
    E("    v_fma_f32 v27, v28, v28, v27")
    E("    v_cvt_pk_bf16_f32 v27, v27, v27")
    E("    v_lshlrev_b32 v27, 16, v27")
    E(f"    v_add_f32 v27, {f32(1e-5)}, v27")
    E("    v_cvt_pk_bf16_f32 v27, v27, v27")
    E("    v_lshlrev_b32 v27, 16, v27")
    E("    v_sqrt_f32 v27, v27")
    E("    s_nop 0")
    E("    v_cvt_pk_bf16_f32 v27, v27, v27")
    E("    v_lshlrev_b32 v27, 16, v27")
    E("    v_rcp_f32 v28, v27")
    E("    s_nop 0")
    E(f"    s_lshl_b32 s{s_t}, s{s_wave}, 8")
    E("    v_lshlrev_b32 v29, 3, v2")
    E(f"    v_add_u32 v29, s{s_t}, v29")
    E("    v_mov_b32 v30, v26")
    E("    v_mov_b32 v31, v28")
    E("    ds_write_b64 v29, v[30:31]")
    E("    v_lshlrev_b32 v29, 6, v6")
    E(f"    v_add_u32 v29, s{s_t}, v29")
    E("    s_waitcnt lgkmcnt(0)")
    PR = 32
    for q in range(4):
        E(f"    ds_read_b128 v[{PR+4*q}:{PR+4*q+3}], v29 offset:{16*q}")
    E("    s_waitcnt lgkmcnt(0)")
    k1 = 0.044715
    c0 = -2.0 * 1.4426950408889634 * 0.7978845608028654
    X = 48
    for i in range(4):
        E(f"    v_lshlrev_b32 v{X+2*i}, 16, v{20+i}")
        E(f"    v_and_b32 v{X+2*i+1}, 0xffff0000, v{20+i}")
    def round8():
        for i in range(4):
            E(f"    v_cvt_pk_bf16_f32 v{56+i}, v{X+2*i}, v{X+2*i+1}")
        for i in range(4):
            E(f"    v_lshlrev_b32 v{X+2*i}, 16, v{56+i}")
            E(f"    v_and_b32 v{X+2*i+1}, 0xffff0000, v{56+i}")
    for c in range(8):
        E(f"    v_sub_f32 v{X+c}, v{X+c}, v{PR+2*c}")
    round8()
    for c in range(8):
        E(f"    v_mul_f32 v{X+c}, v{X+c}, v{PR+2*c+1}")
    round8()
    for i in range(4):
        E(f"    v_lshlrev_b32 v{60}, 16, v{12+i}")
        E(f"    v_and_b32 v{61}, 0xffff0000, v{12+i}")
        E(f"    v_mul_f32 v{X+2*i}, v{X+2*i}, v60")
        E(f"    v_mul_f32 v{X+2*i+1}, v{X+2*i+1}, v61")
    round8()
    for i in range(4):
        E(f"    v_lshlrev_b32 v{60}, 16, v{16+i}")
        E(f"    v_and_b32 v{61}, 0xffff0000, v{16+i}")
        E(f"    v_add_f32 v{X+2*i}, v{X+2*i}, v60")
        E(f"    v_add_f32 v{X+2*i+1}, v{X+2*i+1}, v61")
    round8()
    E(f"    v_mov_b32 v62, {f32(c0*k1)}")
    E(f"    v_mov_b32 v63, {f32(c0)}")
    for c in range(8):
        E(f"    v_mul_f32 v{64+c}, v{X+c}, v{X+c}")
        E(f"    v_fma_f32 v{64+c}, v{64+c}, v62, v63")
        E(f"    v_mul_f32 v{64+c}, v{64+c}, v{X+c}")
    for c in range(8):
        E(f"    v_exp_f32 v{64+c}, v{64+c}")
    E("    s_nop 0")
    for c in range(8):
        E(f"    v_add_f32 v{64+c}, 1.0, v{64+c}")
    for c in range(8):
        E(f"    v_rcp_f32 v{64+c}, v{64+c}")
    E("    s_nop 0")
    for c in range(8):
        E(f"    v_mul_f32 v{X+c}, v{X+c}, v{64+c}")
    for i in range(4):
        E(f"    v_cvt_pk_bf16_f32 v{56+i}, v{X+2*i}, v{X+2*i+1}")
    E(f"    v_cmp_gt_u32 vcc, {L_}, v4")
    E(f"    s_and_saveexec_b64 s[{s_t+2}:{s_t+3}], vcc")
    E("    s_cbranch_execz L2_end")
    E(f"    buffer_store_dwordx4 v[56:59], v5, s[{S_O2}:{S_O2+3}], 0 offen")
    E("L2_end:")
    E("    s_endpgm")


def main():
    hdr = open("standalone__self_sup_conv_stem_hubert__speech.s.ref").read().split("\n")
    for h in hdr[:10]:
        E(h)
    E(f"; @launch kernel=conv_kernel grid=(256,1,1) block=(576,1,1) lds={LDS1}")
    E("; @launch kernel=norm_kernel grid=(256,1,1) block=(512,1,1) lds=2048")
    E('.amdgcn_target "amdgcn-amd-amdhsa--gfx950"')
    E(".text")
    import conv2
    conv2.build(dict(E=E, stamp=stamp, VM=VM, DIAG=DIAG, PFMODE=PFMODE, X_BYTES=X_BYTES, W_BYTES=W_BYTES,
                     O_BYTES=O_BYTES, WS_STATS_BYTES=WS_STATS_BYTES, stamp_n=stamp_n, s_stamp=s_stamp))
    gen_norm()
    E('.section .rodata,"a"')
    for name in ("conv_kernel", "norm_kernel"):
        E(".p2align 6")
        E(f".amdhsa_kernel {name}")
        nv = 168 if name == "conv_kernel" else 256
        E(f"  .amdhsa_next_free_vgpr {nv}")
        E("  .amdhsa_next_free_sgpr 102")
        E(f"  .amdhsa_accum_offset {nv}")
        E("  .amdhsa_group_segment_fixed_size 0")
        E("  .amdhsa_kernarg_size 64")
        E("  .amdhsa_user_sgpr_count 2")
        E("  .amdhsa_user_sgpr_kernarg_segment_ptr 1")
        E("  .amdhsa_system_sgpr_workgroup_id_x 1")
        E(".end_amdhsa_kernel")
    open(OUT, "w").write("\n".join(lines) + "\n")
    print("wrote", OUT, len(lines), "lines")


if __name__ == "__main__":
    main()
```

```python
import copy

def build(G):
    E, stamp, VM, DIAG, PFMODE = G["E"], G["stamp"], G["VM"], G["DIAG"], G["PFMODE"]
    T_, L_ = 4000, 1985
    X_BYTES, W_BYTES, O_BYTES, WS_STATS_BYTES = G["X_BYTES"], G["W_BYTES"], G["O_BYTES"], G["WS_STATS_BYTES"]
    PH = 4608
    XB = 8 * PH
    WRING0 = 2 * XB
    S_X, S_W, S_O, S_WSR, S_BI = 16, 20, 24, 28, 32
    s_wave = 36
    s_b, s_rt, s_ct = 37, 38, 39
    s_wchunk, s_wring = 40, 41
    s_xb, s_xbn = 42, 43
    s_xrow = 44
    s_wq = 45
    s_cc = 46
    s_tmp = 47
    s_l0, s_n0 = 48, 49
    s_w1k = 50
    s_m4, s_scr = 51, 52
    s_t = 58
    v_lane, v_m, v_g = 1, 2, 3
    v_Aa, v_Ab, v_At0, v_At1 = 4, 5, 6, 7
    v_Bl, v_Wl = 8, 9
    v_X = 10
    v_bias = 15
    v_tmp = 16
    ACC = 32
    FA = [96, 124]
    FB = 152

    E(".globl conv_kernel")
    E(".p2align 8")
    E(".type conv_kernel,@function")
    E("conv_kernel:")
    E("    s_cmp_ge_u32 s2, 256")
    E("    s_cbranch_scc1 L1_end")
    stamp(True)
    stamp()
    E("    s_load_dwordx4 s[4:7], s[0:1], 0")
    E("    s_load_dwordx2 s[8:9], s[0:1], 16")
    E("    s_load_dwordx2 s[10:11], s[0:1], 40")
    E("    s_load_dwordx2 s[12:13], s[0:1], 56")
    E(f"    v_and_b32 v{v_lane}, 63, v0")
    E(f"    v_lshrrev_b32 v{v_tmp}, 6, v0")
    E(f"    v_and_b32 v{v_m}, 31, v0")
    E(f"    v_lshrrev_b32 v{v_g}, 5, v{v_lane}")
    E(f"    v_readfirstlane_b32 s{s_wave}, v{v_tmp}")
    E(f"    s_and_b32 s{s_t}, s2, 7")
    E(f"    s_lshr_b32 s{s_t+1}, s2, 3")
    E(f"    s_lshr_b32 s{s_b}, s{s_t}, 2")
    E(f"    s_and_b32 s{s_t}, s{s_t}, 3")
    E(f"    s_lshl_b32 s{s_t}, s{s_t}, 1")
    E(f"    s_and_b32 s{s_t+2}, s{s_t+1}, 1")
    E(f"    s_or_b32 s{s_ct}, s{s_t}, s{s_t+2}")
    E(f"    s_lshr_b32 s{s_rt}, s{s_t+1}, 1")
    E(f"    s_lshl_b32 s{s_l0}, s{s_rt}, 7")
    E(f"    s_lshl_b32 s{s_n0}, s{s_ct}, 5")
    E(f"    s_and_b32 s{s_wq}, s{s_wave}, 3")
    E(f"    v_lshrrev_b32 v{v_tmp}, 3, v{v_lane}")
    E(f"    v_and_b32 v{v_tmp+1}, 7, v{v_lane}")
    E(f"    s_lshl_b32 s{s_t}, s{s_wave}, 3")
    E(f"    v_add_u32 v{v_tmp}, s{s_t}, v{v_tmp}")
    for j in range(5):
        if j:
            E(f"    v_add_u32 v{v_tmp}, 64, v{v_tmp}")
        E(f"    v_mul_u32_u24 v{v_tmp+2}, 1821, v{v_tmp}")
        E(f"    v_lshrrev_b32 v{v_tmp+2}, 16, v{v_tmp+2}")
        E(f"    v_mul_u32_u24 v{v_tmp+3}, 36, v{v_tmp+2}")
        E(f"    v_sub_u32 v{v_tmp+3}, v{v_tmp}, v{v_tmp+3}")
        E(f"    v_lshlrev_b32 v{v_tmp+4}, 3, v{v_tmp+3}")
        E(f"    v_add_u32 v{v_tmp+4}, v{v_tmp+4}, v{v_tmp+2}")
        E(f"    v_lshlrev_b32 v{v_tmp+4}, 9, v{v_tmp+4}")
        E(f"    v_lshrrev_b32 v{v_tmp+3}, 1, v{v_tmp+3}")
        E(f"    v_and_b32 v{v_tmp+3}, 7, v{v_tmp+3}")
        E(f"    v_xor_b32 v{v_tmp+3}, v{v_tmp+1}, v{v_tmp+3}")
        E(f"    v_lshlrev_b32 v{v_tmp+3}, 4, v{v_tmp+3}")
        E(f"    v_or_b32 v{v_X+j}, v{v_tmp+4}, v{v_tmp+3}")
    E(f"    s_mul_i32 s{s_t}, s{s_b}, {T_}")
    E(f"    s_lshl_b32 s{s_t+1}, s{s_rt}, 8")
    E(f"    s_add_u32 s{s_t}, s{s_t}, s{s_t+1}")
    E(f"    s_lshl_b32 s{s_xrow}, s{s_t}, 9")
    E(f"    s_lshl_b32 s{s_w1k}, s{s_wave}, 10")
    E(f"    s_mov_b32 s{s_xbn}, s{s_w1k}")
    E("    s_waitcnt lgkmcnt(0)")
    def srd(d, lo, size):
        E(f"    s_mov_b32 s{d}, s{lo}")
        E(f"    s_mov_b32 s{d+1}, s{lo+1}")
        E(f"    s_mov_b32 s{d+2}, {size}")
        E(f"    s_mov_b32 s{d+3}, 0x00020000")
    srd(S_X, 4, X_BYTES)
    srd(S_W, 6, W_BYTES)
    srd(S_BI, 8, 512)
    srd(S_O, 10, O_BYTES)
    srd(S_WSR, 12, WS_STATS_BYTES)
    E(f"    s_cmp_eq_u32 s{s_wave}, 8")
    E("    s_cbranch_scc1 L1_pf")
    vm = VM()

    def xdma(e, j, tag, vmx):
        if j == 4:
            e(f"    s_mov_b32 m0, s{s_m4}")
        else:
            e(f"    s_add_u32 m0, s{s_xbn}, {j*8192}")
        e(f"    s_nop 0")
        e(f"    buffer_load_dwordx4 v{v_X+j}, s[{S_X}:{S_X+3}], s{s_xrow} offen lds")
        vmx()
    def m4(e):
        e(f"    s_add_u32 s{s_m4}, s{s_xbn}, 32768")
        e(f"    s_cmp_ge_u32 s{s_wave}, 4")
        e(f"    s_cselect_b32 s{s_m4}, s{s_scr}, s{s_m4}")
    E(f"    s_lshl_b32 s{s_scr}, s{s_wq}, 10")
    E(f"    s_add_u32 s{s_scr}, s{s_scr}, 139264")
    m4(E)
    for j in range(5):
        xdma(E, j, "p", lambda: vm.issue("x0"))
    E(f"    s_add_u32 s{s_xrow}, s{s_xrow}, 128")
    E(f"    v_lshrrev_b32 v{v_tmp}, 2, v{v_lane}")
    E(f"    v_lshlrev_b32 v{v_tmp}, 9, v{v_tmp}")
    E(f"    v_and_b32 v{v_tmp+1}, 3, v{v_lane}")
    E(f"    v_lshlrev_b32 v{v_tmp+1}, 4, v{v_tmp+1}")
    E(f"    v_or_b32 v{v_Wl}, v{v_tmp}, v{v_tmp+1}")
    E(f"    s_lshl_b32 s{s_t}, s{s_wq}, 3")
    E(f"    s_lshr_b32 s{s_t+1}, s{s_wave}, 2")
    E(f"    s_add_u32 s{s_t}, s{s_t}, s{s_t+1}")
    E(f"    s_lshl_b32 s{s_wchunk}, s{s_t}, 17")
    E(f"    s_lshl_b32 s{s_t}, s{s_n0}, 1")
    E(f"    s_add_u32 s{s_wchunk}, s{s_wchunk}, s{s_t}")
    E(f"    s_lshl_b32 s{s_wring}, s{s_wave}, 13")
    E(f"    s_add_u32 s{s_wring}, s{s_wring}, {WRING0}")

    def wconst(P):
        c, pp = divmod(P, 16)
        ks, s = divmod(pp, 4)
        return s * 262144 + ks * 8192 + c * 32768
    def wdma(e, P, vmx):
        e(f"    s_add_u32 m0, s{s_wring}, {(P % 8)*1024}")
        e(f"    s_add_u32 s{s_tmp}, s{s_wchunk}, {wconst(P)}")
        e(f"    buffer_load_dwordx4 v{v_Wl}, s[{S_W}:{S_W+3}], s{s_tmp} offen lds")
        vmx()
    for P in range(8):
        wdma(E, P, lambda: vm.issue(("w", P)))
    E(f"    v_add_u32 v{v_tmp}, s{s_n0}, v{v_m}")
    E(f"    v_lshlrev_b32 v{v_tmp}, 1, v{v_tmp}")
    E(f"    buffer_load_ushort v{v_bias}, v{v_tmp}, s[{S_BI}:{S_BI+3}], 0 offen")
    vm.issue("bias")
    E(f"    s_lshr_b32 s{s_t+1}, s{s_wave}, 2")
    E(f"    s_mul_i32 s{s_t+1}, s{s_t+1}, {PH}")
    for which, dst in ((0, v_Aa), (1, v_Ab)):
        E(f"    v_add_u32 v{v_tmp}, s{s_wq}, v{v_m}")
        if which:
            E(f"    v_add_u32 v{v_tmp}, 1, v{v_tmp}")
        E(f"    v_lshrrev_b32 v{v_tmp+1}, 1, v{v_tmp}")
        E(f"    v_and_b32 v{v_tmp+1}, 7, v{v_tmp+1}")
        E(f"    v_xor_b32 v{v_tmp+1}, v{v_g}, v{v_tmp+1}")
        E(f"    v_lshlrev_b32 v{v_tmp+1}, 4, v{v_tmp+1}")
        E(f"    v_lshlrev_b32 v{v_tmp}, 7, v{v_tmp}")
        E(f"    v_or_b32 v{v_tmp}, v{v_tmp}, v{v_tmp+1}")
        E(f"    v_add_u32 v{dst}, s{s_t+1}, v{v_tmp}")
    E(f"    v_and_b32 v{v_tmp}, 15, v{v_lane}")
    E(f"    v_lshrrev_b32 v{v_tmp+1}, 2, v{v_tmp}")
    E(f"    v_and_b32 v{v_tmp+2}, 3, v{v_tmp}")
    E(f"    v_lshlrev_b32 v{v_tmp+3}, 3, v{v_g}")
    E(f"    v_add_u32 v{v_tmp+3}, v{v_tmp+3}, v{v_tmp+1}")
    E(f"    v_lshlrev_b32 v{v_tmp+3}, 6, v{v_tmp+3}")
    E(f"    v_lshrrev_b32 v{v_tmp+1}, 4, v{v_lane}")
    E(f"    v_and_b32 v{v_tmp+1}, 1, v{v_tmp+1}")
    E(f"    v_lshlrev_b32 v{v_tmp+1}, 5, v{v_tmp+1}")
    E(f"    v_add_u32 v{v_tmp+3}, v{v_tmp+3}, v{v_tmp+1}")
    E(f"    v_lshlrev_b32 v{v_tmp+2}, 3, v{v_tmp+2}")
    E(f"    v_add_u32 v{v_tmp+3}, v{v_tmp+3}, v{v_tmp+2}")
    E(f"    v_add_u32 v{v_Bl}, s{s_wring}, v{v_tmp+3}")
    for r in range(64):
        E(f"    v_mov_b32 v{ACC+r}, 0")
    E(f"    s_mov_b32 s{s_xb}, 0")
    E(f"    s_add_u32 s{s_xbn}, s{s_xbn}, {XB}")
    m4(E)
    E(f"    s_mov_b32 s{s_cc}, 0")
    E(f"    s_cmp_eq_u32 s{s_wave}, 7")
    E(f"    s_cselect_b64 vcc, -1, 0")

    def aread(e, st, ee):
        av = v_At0 if ee < 4 else v_At1
        e(f"    ds_read_b128 v[{FA[st]+4*ee}:{FA[st]+4*ee+3}], v{av} offset:{2*(ee % 4)*PH}")
    def aaddr(e, ks):
        if ks == 0:
            e(f"    v_add_u32 v{v_At0}, s{s_xb}, v{v_Aa}")
            e(f"    v_add_u32 v{v_At1}, s{s_xb}, v{v_Ab}")
        else:
            e(f"    v_xor_b32 v{v_At0}, 32, v{v_At0}")
            e(f"    v_xor_b32 v{v_At1}, 32, v{v_At1}")
    def bread(e, P):
        b = FB + 4 * (P % 4)
        e(f"    ds_read_b64_tr_b16 v[{b}:{b+1}], v{v_Bl} offset:{(P % 8)*1024}")
        e(f"    ds_read_b64_tr_b16 v[{b+2}:{b+3}], v{v_Bl} offset:{(P % 8)*1024+256}")

    E(f"    s_waitcnt vmcnt({vm.need({'x0'})})")
    E("    s_barrier")
    stamp()
    aaddr(E, 0)
    for ee in range(7):
        aread(E, 0, ee)
    E(f"    s_waitcnt vmcnt({vm.need({('w', 2)})})")
    for P in range(3):
        bread(E, P)
    E("    s_waitcnt lgkmcnt(0)")
    for P in (8, 9):
        wdma(E, P, lambda: vm.issue(("w", P)))

    def aaddr_next(e, ks_next):
        if ks_next == 0:
            aaddr(e, 0)
        else:
            m = (32 * ks_next) ^ (32 * (ks_next - 1))
            e(f"    v_xor_b32 v{v_At0}, {m}, v{v_At0}")
            e(f"    v_xor_b32 v{v_At1}, {m}, v{v_At1}")

    def body(vm, it, Ns):
        out = []
        e = out.append
        for ks in range(4):
            cur, nxt = ks % 2, 1 - ks % 2
            for q in range(4):
                Q = 4 * ks + q
                def mfma(f):
                    if q == 3:
                        e(f"    s_cbranch_vccnz L1_skip_{Q}_{f}")
                    ee = f + q
                    e(f"    v_mfma_f32_32x32x16_bf16 v[{ACC+16*f}:{ACC+16*f+15}], v[{FA[cur]+4*ee}:{FA[cur]+4*ee+3}], v[{FB+4*q}:{FB+4*q+3}], v[{ACC+16*f}:{ACC+16*f+15}]")
                    if q == 3:
                        e(f"L1_skip_{Q}_{f}:")
                e(f"    ; ---- quarter {Q}")
                e("    s_waitcnt lgkmcnt(0)")
                mfma(0)
                if ks == 3 and q == 1:
                    n = vm.need({("x", it + 1)})
                    key = ("xwait",)
                    Ns[key] = min(Ns.get(key, 63), n)
                    e(f"    s_waitcnt vmcnt({Ns[key]})")
                    e("    s_barrier")
                    e(f"    s_xor_b32 s{s_xb}, s{s_xb}, {XB}")
                    e(f"    s_xor_b32 s{s_xbn}, s{s_xb}, {XB}")
                    e(f"    s_add_u32 s{s_xbn}, s{s_xbn}, s{s_w1k}")
                    m4(e)
                gp = it * 16 + Q + 3
                n = vm.need({("w", gp)})
                key = ("wwait", Q)
                Ns[key] = min(Ns.get(key, 63), n)
                e(f"    s_waitcnt vmcnt({Ns[key]})")
                bread(e, Q + 3)
                mfma(1)
                if ks < 3:
                    plan = [(0, 1), (2, 3), (4, 5), (6,)][q]
                else:
                    plan = [(), (0, 1, 2), (3, 4, 5), (6,)][q]
                if plan and plan[0] == 0:
                    aaddr_next(e, (ks + 1) % 4)
                for ee in plan:
                    aread(e, nxt, ee)
                wdma(e, Q + 10, lambda: vm.issue(("w", it * 16 + Q + 10)))
                mfma(2)
                if Q < 5:
                    xdma(e, Q, "l", lambda: vm.issue(("x", it + 1)))
                mfma(3)
        e(f"    s_add_u32 s{s_wchunk}, s{s_wchunk}, 32768")
        e(f"    s_add_u32 s{s_xrow}, s{s_xrow}, 128")
        return out

    Ns = {}
    for _ in range(2):
        vms = copy.deepcopy(vm)
        for it in range(4):
            body(vms, it, Ns)
    text = body(copy.deepcopy(vm), 0, Ns)
    E("L1_loop:")
    for t in text:
        E(t)
    E(f"    s_add_u32 s{s_cc}, s{s_cc}, 1")
    E(f"    s_cmp_lt_u32 s{s_cc}, 4")
    E("    s_cbranch_scc1 L1_loop")
    stamp()

    E("    s_waitcnt vmcnt(0) lgkmcnt(0)")
    E("    s_nop 15")
    E("    s_nop 7")
    E("    s_barrier")
    stamp()
    E(f"    s_lshl_b32 s{s_t}, s{s_wave}, 14")
    E(f"    v_lshlrev_b32 v{v_tmp}, 4, v{v_lane}")
    E(f"    v_add_u32 v{v_tmp+1}, s{s_t}, v{v_tmp}")
    for rg in range(16):
        E(f"    ds_write_b128 v{v_tmp+1}, v[{ACC+4*rg}:{ACC+4*rg+3}] offset:{rg*1024}")
    E("    s_waitcnt lgkmcnt(0)")
    E("    s_barrier")
    stamp()
    E(f"    s_lshl_b32 s{s_t}, s{s_wave}, 11")
    E(f"    v_add_u32 v{v_tmp+1}, s{s_t}, v{v_tmp}")
    E(f"    v_add_u32 v{v_tmp+2}, 0x10000, v{v_tmp+1}")
    P0 = 96
    for sw in range(8):
        base = v_tmp + 1 if sw < 4 else v_tmp + 2
        off = (sw % 4) * 16384
        E(f"    ds_read_b128 v[{P0+8*sw}:{P0+8*sw+3}], v{base} offset:{off}")
        E(f"    ds_read_b128 v[{P0+8*sw+4}:{P0+8*sw+7}], v{base} offset:{off+1024}")
    E("    s_waitcnt lgkmcnt(0)")
    Y = 32
    for i in range(8):
        E(f"    v_add_f32 v{Y+i}, v{P0+i}, v{P0+8+i}")
    for sw in range(2, 8):
        for i in range(8):
            E(f"    v_add_f32 v{Y+i}, v{Y+i}, v{P0+8*sw+i}")
    E(f"    v_lshlrev_b32 v{v_bias}, 16, v{v_bias}")
    PK = 40
    def round8(src, dst):
        for i in range(4):
            E(f"    v_cvt_pk_bf16_f32 v{PK+i}, v{src+2*i}, v{src+2*i+1}")
        for i in range(4):
            E(f"    v_lshlrev_b32 v{dst+2*i}, 16, v{PK+i}")
            E(f"    v_and_b32 v{dst+2*i+1}, 0xffff0000, v{PK+i}")
    round8(Y, Y)
    for i in range(8):
        E(f"    v_add_f32 v{Y+i}, v{Y+i}, v{v_bias}")
    round8(Y, Y)
    E(f"    s_lshl_b32 s{s_t}, s{s_wave}, 10")
    E(f"    s_add_u32 s{s_t}, s{s_t}, 131072")
    E(f"    v_lshlrev_b32 v{v_tmp}, 8, v{v_g}")
    E(f"    v_lshlrev_b32 v{v_tmp+1}, 1, v{v_m}")
    E(f"    v_add_u32 v{v_tmp}, v{v_tmp}, v{v_tmp+1}")
    E(f"    v_add_u32 v{v_tmp}, s{s_t}, v{v_tmp}")
    for p in range(4):
        r0 = 8 * (p // 2) + 2 * (p % 2)
        E(f"    ds_write_b16 v{v_tmp}, v{PK+p} offset:{r0*64}")
        E(f"    ds_write_b16_d16_hi v{v_tmp}, v{PK+p} offset:{(r0+1)*64}")
    E(f"    v_lshlrev_b32 v{v_tmp+1}, 4, v{v_lane}")
    E(f"    v_add_u32 v{v_tmp+1}, s{s_t}, v{v_tmp+1}")
    E("    s_waitcnt lgkmcnt(0)")
    E(f"    ds_read_b128 v[44:47], v{v_tmp+1}")
    E(f"    s_and_b32 s{s_t}, s{s_wave}, 1")
    E(f"    s_lshl_b32 s{s_t}, s{s_t}, 6")
    E(f"    s_lshr_b32 s{s_t+1}, s{s_wave}, 1")
    E(f"    s_add_u32 s{s_t}, s{s_t}, s{s_t+1}")
    E(f"    s_add_u32 s{s_t}, s{s_t}, s{s_l0}")
    E(f"    v_lshrrev_b32 v{v_tmp+2}, 2, v{v_lane}")
    E(f"    v_lshrrev_b32 v{v_tmp+3}, 2, v{v_tmp+2}")
    E(f"    v_lshlrev_b32 v{v_tmp+3}, 4, v{v_tmp+3}")
    E(f"    v_and_b32 v{v_tmp+2}, 3, v{v_tmp+2}")
    E(f"    v_lshlrev_b32 v{v_tmp+2}, 2, v{v_tmp+2}")
    E(f"    v_add_u32 v{v_tmp+2}, v{v_tmp+2}, v{v_tmp+3}")
    E(f"    v_add_u32 v{v_tmp+2}, s{s_t}, v{v_tmp+2}")
    E(f"    s_mul_i32 s{s_t+1}, s{s_b}, {L_}")
    E(f"    v_add_u32 v{v_tmp+3}, s{s_t+1}, v{v_tmp+2}")
    E(f"    v_lshlrev_b32 v{v_tmp+3}, 9, v{v_tmp+3}")
    E(f"    v_and_b32 v{v_tmp+4}, 3, v{v_lane}")
    E(f"    v_lshlrev_b32 v{v_tmp+4}, 4, v{v_tmp+4}")
    E(f"    v_add_u32 v{v_tmp+3}, v{v_tmp+3}, v{v_tmp+4}")
    E(f"    s_lshl_b32 s{s_t+1}, s{s_n0}, 1")
    E(f"    v_add_u32 v{v_tmp+3}, s{s_t+1}, v{v_tmp+3}")
    E(f"    v_cmp_gt_u32 vcc, {L_}, v{v_tmp+2}")
    E(f"    s_and_saveexec_b64 s[{s_t+2}:{s_t+3}], vcc")
    E("    s_cbranch_execz L1_nostore")
    E("    s_waitcnt lgkmcnt(0)")
    E(f"    buffer_store_dwordx4 v[44:47], v{v_tmp+3}, s[{S_O}:{S_O+3}], 0 offen")
    E("L1_nostore:")
    E(f"    s_mov_b64 exec, s[{s_t+2}:{s_t+3}]")
    stamp()
    E(f"    s_sub_u32 s{s_t}, {L_}, s{s_t}")
    E(f"    v_lshlrev_b32 v{v_tmp}, 4, v{v_g}")
    E(f"    v_sub_u32 v{v_tmp}, s{s_t}, v{v_tmp}")
    MV = 48
    def cval(i):
        return 32 * (i // 4) + 4 * (i % 4)
    for i in range(8):
        E(f"    v_cmp_lt_i32 vcc, {cval(i)}, v{v_tmp}")
        E(f"    s_nop 1")
        E(f"    v_cndmask_b32 v{MV+i}, 0, v{Y+i}, vcc")
    E(f"    v_add_f32 v{v_tmp+1}, v{MV}, v{MV+1}")
    for i in range(2, 8):
        E(f"    v_add_f32 v{v_tmp+1}, v{v_tmp+1}, v{MV+i}")
    def xhalf(v, t):
        E(f"    v_mov_b32 v{t}, v{v}")
        E("    s_nop 1")
        E(f"    v_permlane32_swap_b32 v{v}, v{t}")
        E("    s_nop 1")
        E(f"    v_add_f32 v{v}, v{v}, v{t}")
    xhalf(v_tmp + 1, v_tmp + 2)
    ST0 = 131072 + 8192
    E(f"    v_lshlrev_b32 v{v_tmp+3}, 5, v{v_m}")
    E(f"    s_lshl_b32 s{s_t}, s{s_wave}, 2")
    E(f"    s_add_u32 s{s_t}, s{s_t}, {ST0}")
    E(f"    v_add_u32 v{v_tmp+3}, s{s_t}, v{v_tmp+3}")
    E(f"    ds_write_b32 v{v_tmp+3}, v{v_tmp+1}")
    E("    s_waitcnt lgkmcnt(0)")
    E("    s_barrier")
    E(f"    v_lshlrev_b32 v{v_tmp+4}, 5, v{v_m}")
    E(f"    v_add_u32 v{v_tmp+4}, {ST0}, v{v_tmp+4}")
    E(f"    ds_read_b128 v[56:59], v{v_tmp+4}")
    E(f"    ds_read_b128 v[60:63], v{v_tmp+4} offset:16")
    E("    s_waitcnt lgkmcnt(0)")
    E(f"    v_add_f32 v{v_tmp+5}, v56, v57")
    for r in range(58, 64):
        E(f"    v_add_f32 v{v_tmp+5}, v{v_tmp+5}, v{r}")
    E(f"    s_sub_u32 s{s_t}, {L_}, s{s_l0}")
    E(f"    s_min_u32 s{s_t}, s{s_t}, 128")
    E(f"    v_cvt_f32_u32 v{v_tmp+6}, s{s_t}")
    E(f"    v_rcp_f32 v{v_tmp+6}, v{v_tmp+6}")
    E("    s_nop 0")
    E(f"    v_mul_f32 v{v_tmp+5}, v{v_tmp+5}, v{v_tmp+6}")
    for i in range(8):
        E(f"    v_sub_f32 v{MV+i}, v{Y+i}, v{v_tmp+5}")
        E(f"    v_cmp_lt_i32 vcc, {cval(i)}, v{v_tmp}")
        E(f"    s_nop 1")
        E(f"    v_cndmask_b32 v{MV+i}, 0, v{MV+i}, vcc")
    E(f"    v_mul_f32 v{v_tmp+1}, v{MV}, v{MV}")
    for i in range(1, 8):
        E(f"    v_fma_f32 v{v_tmp+1}, v{MV+i}, v{MV+i}, v{v_tmp+1}")
    xhalf(v_tmp + 1, v_tmp + 2)
    E(f"    ds_write_b32 v{v_tmp+3}, v{v_tmp+1} offset:1024")
    E("    s_waitcnt lgkmcnt(0)")
    E("    s_barrier")
    E(f"    s_cmp_lg_u32 s{s_wave}, 0")
    E("    s_cbranch_scc1 L1_end")
    E(f"    ds_read_b128 v[56:59], v{v_tmp+4} offset:1024")
    E(f"    ds_read_b128 v[60:63], v{v_tmp+4} offset:1040")
    E("    s_waitcnt lgkmcnt(0)")
    E(f"    v_add_f32 v{v_tmp+6}, v56, v57")
    for r in range(58, 64):
        E(f"    v_add_f32 v{v_tmp+6}, v{v_tmp+6}, v{r}")
    E(f"    s_lshl_b32 s{s_t}, s{s_b}, 4")
    E(f"    s_add_u32 s{s_t}, s{s_t}, s{s_rt}")
    E(f"    s_lshl_b32 s{s_t}, s{s_t}, 8")
    E(f"    s_add_u32 s{s_t}, s{s_t}, s{s_n0}")
    E(f"    v_add_u32 v{v_tmp+7}, s{s_t}, v{v_m}")
    E(f"    v_lshlrev_b32 v{v_tmp+7}, 3, v{v_tmp+7}")
    E(f"    v_mov_b32 v56, v{v_tmp+5}")
    E(f"    v_mov_b32 v57, v{v_tmp+6}")
    E(f"    v_cmp_gt_u32 vcc, 32, v{v_lane}")
    E(f"    s_and_saveexec_b64 s[{s_t+2}:{s_t+3}], vcc")
    E(f"    buffer_store_dwordx2 v[56:57], v{v_tmp+7}, s[{S_WSR}:{S_WSR+3}], 0 offen")
    if DIAG:
        stamp()
        stamp(True)
        E("    s_load_dwordx2 s[4:5], s[0:1], 56")
        E("    s_waitcnt lgkmcnt(0)")
        E("    s_add_u32 s4, s4, 0x100000")
        E("    s_addc_u32 s5, s5, 0")
        E("    s_mov_b32 s6, 65536")
        E("    s_mov_b32 s7, 0x00020000")
        E("    s_lshl_b32 s8, s2, 6")
        E("    v_mov_b32 v1, s8")
        for i in range(G["stamp_n"][0]):
            E(f"    v_mov_b32 v2, s{G['s_stamp']+2*i}")
            E(f"    buffer_store_dword v2, v1, s[4:7], 0 offen offset:{4*i}")
    E("L1_end:")
    E("    s_endpgm")
    E("L1_pf:")
    E(f"    v_lshlrev_b32 v{v_tmp}, 9, v{v_lane}")
    E(f"    s_and_b32 s{s_t}, s{s_ct}, 1")
    E(f"    s_lshl_b32 s{s_t}, s{s_t}, 4")
    E(f"    s_add_u32 s{s_t}, s{s_t}, s{s_rt}")
    E(f"    s_lshl_b32 s{s_t}, s{s_t}, 17")
    E(f"    s_lshl_b32 s{s_t+1}, s{s_n0}, 1")
    E(f"    s_add_u32 s{s_t}, s{s_t}, s{s_t+1}")
    E(f"    v_add_u32 v{v_tmp}, s{s_t}, v{v_tmp}")
    for c in range(4):
        if PFMODE & 1:
            E(f"    s_mov_b32 s{s_t}, {c*32768}")
            E(f"    buffer_load_dword v{32+c}, v{v_tmp}, s[{S_W}:{S_W+3}], s{s_t} offen")
        if c < 3:
            E("    s_barrier")
    E("    s_waitcnt vmcnt(0)")
    E("    s_endpgm")
```

```python
import copy

def build(G):
    E, stamp, VM, DIAG, PFMODE = G["E"], G["stamp"], G["VM"], G["DIAG"], G["PFMODE"]
    T_, L_ = 4000, 1985
    X_BYTES, W_BYTES, O_BYTES, WS_STATS_BYTES = G["X_BYTES"], G["W_BYTES"], G["O_BYTES"], G["WS_STATS_BYTES"]
    PH = 4608
    XB = 8 * PH
    WRING0 = 2 * XB
    S_X, S_W, S_O, S_WSR, S_BI = 16, 20, 24, 28, 32
    s_wave = 36
    s_b, s_rt, s_ct = 37, 38, 39
    s_wchunk, s_wring = 40, 41
    s_xb, s_xbn = 42, 43
    s_xrow = 44
    s_wq = 45
    s_cc = 46
    s_tmp = 47
    s_l0, s_n0 = 48, 49
    s_w1k = 50
    s_m4, s_scr = 51, 52
    s_t = 58
    v_lane, v_m, v_g = 1, 2, 3
    v_Aa, v_Ab, v_At0, v_At1 = 4, 5, 6, 7
    v_Bl, v_Wl = 8, 9
    v_X = 10
    v_bias = 15
    v_tmp = 16
    ACC = 32
    FA = [96, 124]
    FB = 152

    E(".globl conv_kernel")
    E(".p2align 8")
    E(".type conv_kernel,@function")
    E("conv_kernel:")
    E("    s_cmp_ge_u32 s2, 256")
    E("    s_cbranch_scc1 L1_end")
    stamp(True)
    stamp()
    E("    s_load_dwordx4 s[4:7], s[0:1], 0")
    E("    s_load_dwordx2 s[8:9], s[0:1], 16")
    E("    s_load_dwordx2 s[10:11], s[0:1], 40")
    E("    s_load_dwordx2 s[12:13], s[0:1], 56")
    E(f"    v_and_b32 v{v_lane}, 63, v0")
    E(f"    v_lshrrev_b32 v{v_tmp}, 6, v0")
    E(f"    v_and_b32 v{v_m}, 31, v0")
    E(f"    v_lshrrev_b32 v{v_g}, 5, v{v_lane}")
    E(f"    v_readfirstlane_b32 s{s_wave}, v{v_tmp}")
    E(f"    s_and_b32 s{s_t}, s2, 7")
    E(f"    s_lshr_b32 s{s_t+1}, s2, 3")
    E(f"    s_lshr_b32 s{s_b}, s{s_t}, 2")
    E(f"    s_and_b32 s{s_t}, s{s_t}, 3")
    E(f"    s_lshl_b32 s{s_t}, s{s_t}, 1")
    E(f"    s_and_b32 s{s_t+2}, s{s_t+1}, 1")
    E(f"    s_or_b32 s{s_ct}, s{s_t}, s{s_t+2}")
    E(f"    s_lshr_b32 s{s_rt}, s{s_t+1}, 1")
    E(f"    s_lshl_b32 s{s_l0}, s{s_rt}, 7")
    E(f"    s_lshl_b32 s{s_n0}, s{s_ct}, 5")
    E(f"    s_and_b32 s{s_wq}, s{s_wave}, 3")
    E(f"    v_lshrrev_b32 v{v_tmp}, 3, v{v_lane}")
    E(f"    v_and_b32 v{v_tmp+1}, 7, v{v_lane}")
    E(f"    s_lshl_b32 s{s_t}, s{s_wave}, 3")
    E(f"    v_add_u32 v{v_tmp}, s{s_t}, v{v_tmp}")
    for j in range(5):
        if j:
            E(f"    v_add_u32 v{v_tmp}, 64, v{v_tmp}")
        E(f"    v_mul_u32_u24 v{v_tmp+2}, 1821, v{v_tmp}")
        E(f"    v_lshrrev_b32 v{v_tmp+2}, 16, v{v_tmp+2}")
        E(f"    v_mul_u32_u24 v{v_tmp+3}, 36, v{v_tmp+2}")
        E(f"    v_sub_u32 v{v_tmp+3}, v{v_tmp}, v{v_tmp+3}")
        E(f"    v_lshlrev_b32 v{v_tmp+4}, 3, v{v_tmp+3}")
        E(f"    v_add_u32 v{v_tmp+4}, v{v_tmp+4}, v{v_tmp+2}")
        E(f"    v_lshlrev_b32 v{v_tmp+4}, 9, v{v_tmp+4}")
        E(f"    v_lshrrev_b32 v{v_tmp+3}, 1, v{v_tmp+3}")
        E(f"    v_and_b32 v{v_tmp+3}, 7, v{v_tmp+3}")
        E(f"    v_xor_b32 v{v_tmp+3}, v{v_tmp+1}, v{v_tmp+3}")
        E(f"    v_lshlrev_b32 v{v_tmp+3}, 4, v{v_tmp+3}")
        E(f"    v_or_b32 v{v_X+j}, v{v_tmp+4}, v{v_tmp+3}")
    E(f"    s_mul_i32 s{s_t}, s{s_b}, {T_}")
    E(f"    s_lshl_b32 s{s_t+1}, s{s_rt}, 8")
    E(f"    s_add_u32 s{s_t}, s{s_t}, s{s_t+1}")
    E(f"    s_lshl_b32 s{s_xrow}, s{s_t}, 9")
    E(f"    s_lshl_b32 s{s_w1k}, s{s_wave}, 10")
    E(f"    s_mov_b32 s{s_xbn}, s{s_w1k}")
    E("    s_waitcnt lgkmcnt(0)")
    def srd(d, lo, size):
        E(f"    s_mov_b32 s{d}, s{lo}")
        E(f"    s_mov_b32 s{d+1}, s{lo+1}")
        E(f"    s_mov_b32 s{d+2}, {size}")
        E(f"    s_mov_b32 s{d+3}, 0x00020000")
    srd(S_X, 4, X_BYTES)
    srd(S_W, 6, W_BYTES)
    srd(S_BI, 8, 512)
    srd(S_O, 10, O_BYTES)
    srd(S_WSR, 12, WS_STATS_BYTES)
    E(f"    s_cmp_eq_u32 s{s_wave}, 8")
    E("    s_cbranch_scc1 L1_pf")
    vm = VM()

    def xdma(e, j, tag, vmx):
        if j == 4:
            e(f"    s_mov_b32 m0, s{s_m4}")
        else:
            e(f"    s_add_u32 m0, s{s_xbn}, {j*8192}")
        e(f"    s_nop 0")
        e(f"    buffer_load_dwordx4 v{v_X+j}, s[{S_X}:{S_X+3}], s{s_xrow} offen lds")
        vmx()
    def m4(e):
        e(f"    s_add_u32 s{s_m4}, s{s_xbn}, 32768")
        e(f"    s_cmp_ge_u32 s{s_wave}, 4")
        e(f"    s_cselect_b32 s{s_m4}, s{s_scr}, s{s_m4}")
    E(f"    s_lshl_b32 s{s_scr}, s{s_wq}, 10")
    E(f"    s_add_u32 s{s_scr}, s{s_scr}, 139264")
    m4(E)
    for j in range(5):
        xdma(E, j, "p", lambda: vm.issue("x0"))
    E(f"    s_add_u32 s{s_xrow}, s{s_xrow}, 128")
    E(f"    v_lshrrev_b32 v{v_tmp}, 2, v{v_lane}")
    E(f"    v_lshlrev_b32 v{v_tmp}, 9, v{v_tmp}")
    E(f"    v_and_b32 v{v_tmp+1}, 3, v{v_lane}")
    E(f"    v_lshlrev_b32 v{v_tmp+1}, 4, v{v_tmp+1}")
    E(f"    v_or_b32 v{v_Wl}, v{v_tmp}, v{v_tmp+1}")
    E(f"    s_lshl_b32 s{s_t}, s{s_wq}, 3")
    E(f"    s_lshr_b32 s{s_t+1}, s{s_wave}, 2")
    E(f"    s_add_u32 s{s_t}, s{s_t}, s{s_t+1}")
    E(f"    s_lshl_b32 s{s_wchunk}, s{s_t}, 17")
    E(f"    s_lshl_b32 s{s_t}, s{s_n0}, 1")
    E(f"    s_add_u32 s{s_wchunk}, s{s_wchunk}, s{s_t}")
    E(f"    s_lshl_b32 s{s_wring}, s{s_wave}, 13")
    E(f"    s_add_u32 s{s_wring}, s{s_wring}, {WRING0}")

    def wconst(P):
        c, pp = divmod(P, 16)
        ks, s = divmod(pp, 4)
        return s * 262144 + ks * 8192 + c * 32768
    def wdma(e, P, vmx):
        e(f"    s_add_u32 m0, s{s_wring}, {(P % 8)*1024}")
        e(f"    s_add_u32 s{s_tmp}, s{s_wchunk}, {wconst(P)}")
        e(f"    buffer_load_dwordx4 v{v_Wl}, s[{S_W}:{S_W+3}], s{s_tmp} offen lds")
        vmx()
    for P in range(8):
        wdma(E, P, lambda: vm.issue(("w", P)))
    E(f"    v_add_u32 v{v_tmp}, s{s_n0}, v{v_m}")
    E(f"    v_lshlrev_b32 v{v_tmp}, 1, v{v_tmp}")
    E(f"    buffer_load_ushort v{v_bias}, v{v_tmp}, s[{S_BI}:{S_BI+3}], 0 offen")
    vm.issue("bias")
    E(f"    s_lshr_b32 s{s_t+1}, s{s_wave}, 2")
    E(f"    s_mul_i32 s{s_t+1}, s{s_t+1}, {PH}")
    for which, dst in ((0, v_Aa), (1, v_Ab)):
        E(f"    v_add_u32 v{v_tmp}, s{s_wq}, v{v_m}")
        if which:
            E(f"    v_add_u32 v{v_tmp}, 1, v{v_tmp}")
        E(f"    v_lshrrev_b32 v{v_tmp+1}, 1, v{v_tmp}")
        E(f"    v_and_b32 v{v_tmp+1}, 7, v{v_tmp+1}")
        E(f"    v_xor_b32 v{v_tmp+1}, v{v_g}, v{v_tmp+1}")
        E(f"    v_lshlrev_b32 v{v_tmp+1}, 4, v{v_tmp+1}")
        E(f"    v_lshlrev_b32 v{v_tmp}, 7, v{v_tmp}")
        E(f"    v_or_b32 v{v_tmp}, v{v_tmp}, v{v_tmp+1}")
        E(f"    v_add_u32 v{dst}, s{s_t+1}, v{v_tmp}")
    E(f"    v_and_b32 v{v_tmp}, 15, v{v_lane}")
    E(f"    v_lshrrev_b32 v{v_tmp+1}, 2, v{v_tmp}")
    E(f"    v_and_b32 v{v_tmp+2}, 3, v{v_tmp}")
    E(f"    v_lshlrev_b32 v{v_tmp+3}, 3, v{v_g}")
    E(f"    v_add_u32 v{v_tmp+3}, v{v_tmp+3}, v{v_tmp+1}")
    E(f"    v_lshlrev_b32 v{v_tmp+3}, 6, v{v_tmp+3}")
    E(f"    v_lshrrev_b32 v{v_tmp+1}, 4, v{v_lane}")
    E(f"    v_and_b32 v{v_tmp+1}, 1, v{v_tmp+1}")
    E(f"    v_lshlrev_b32 v{v_tmp+1}, 5, v{v_tmp+1}")
    E(f"    v_add_u32 v{v_tmp+3}, v{v_tmp+3}, v{v_tmp+1}")
    E(f"    v_lshlrev_b32 v{v_tmp+2}, 3, v{v_tmp+2}")
    E(f"    v_add_u32 v{v_tmp+3}, v{v_tmp+3}, v{v_tmp+2}")
    E(f"    v_add_u32 v{v_Bl}, s{s_wring}, v{v_tmp+3}")
    for r in range(64):
        E(f"    v_mov_b32 v{ACC+r}, 0")
    E(f"    s_mov_b32 s{s_xb}, 0")
    E(f"    s_add_u32 s{s_xbn}, s{s_xbn}, {XB}")
    m4(E)
    E(f"    s_mov_b32 s{s_cc}, 0")
    E(f"    s_cmp_eq_u32 s{s_wave}, 7")
    E(f"    s_cselect_b64 vcc, -1, 0")

    def aread(e, st, ee):
        av = v_At0 if ee < 4 else v_At1
        e(f"    ds_read_b128 v[{FA[st]+4*ee}:{FA[st]+4*ee+3}], v{av} offset:{2*(ee % 4)*PH}")
    def aaddr(e, ks):
        if ks == 0:
            e(f"    v_add_u32 v{v_At0}, s{s_xb}, v{v_Aa}")
            e(f"    v_add_u32 v{v_At1}, s{s_xb}, v{v_Ab}")
        else:
            e(f"    v_xor_b32 v{v_At0}, 32, v{v_At0}")
            e(f"    v_xor_b32 v{v_At1}, 32, v{v_At1}")
    def bread(e, P):
        b = FB + 4 * (P % 4)
        e(f"    ds_read_b64_tr_b16 v[{b}:{b+1}], v{v_Bl} offset:{(P % 8)*1024}")
        e(f"    ds_read_b64_tr_b16 v[{b+2}:{b+3}], v{v_Bl} offset:{(P % 8)*1024+256}")

    E(f"    s_waitcnt vmcnt({vm.need({'x0'})})")
    E("    s_barrier")
    stamp()
    aaddr(E, 0)
    for ee in range(7):
        aread(E, 0, ee)
    E(f"    s_waitcnt vmcnt({vm.need({('w', 2)})})")
    for P in range(3):
        bread(E, P)
    E("    s_waitcnt lgkmcnt(0)")
    for P in (8, 9):
        wdma(E, P, lambda: vm.issue(("w", P)))

    def aaddr_next(e, ks_next):
        if ks_next == 0:
            aaddr(e, 0)
        else:
            m = (32 * ks_next) ^ (32 * (ks_next - 1))
            e(f"    v_xor_b32 v{v_At0}, {m}, v{v_At0}")
            e(f"    v_xor_b32 v{v_At1}, {m}, v{v_At1}")

    def body(vm, it, Ns, last=False):
        out = []
        e = out.append
        for ks in range(4):
            cur, nxt = ks % 2, 1 - ks % 2
            for q in range(4):
                Q = 4 * ks + q
                def mfma(f):
                    if q == 3:
                        e(f"    s_cbranch_vccnz L1_skip{int(last)}_{Q}_{f}")
                    ee = f + q
                    e(f"    v_mfma_f32_32x32x16_bf16 v[{ACC+16*f}:{ACC+16*f+15}], v[{FA[cur]+4*ee}:{FA[cur]+4*ee+3}], v[{FB+4*q}:{FB+4*q+3}], v[{ACC+16*f}:{ACC+16*f+15}]")
                    if q == 3:
                        e(f"L1_skip{int(last)}_{Q}_{f}:")
                e(f"    ; ---- quarter {Q}")
                e("    s_waitcnt lgkmcnt(0)")
                mfma(0)
                if ks == 3 and q == 1 and not last:
                    n = vm.need({("x", it + 1)})
                    key = ("xwait",)
                    Ns[key] = min(Ns.get(key, 63), n)
                    e(f"    s_waitcnt vmcnt({Ns[key]})")
                    e("    s_barrier")
                    e(f"    s_xor_b32 s{s_xb}, s{s_xb}, {XB}")
                    e(f"    s_xor_b32 s{s_xbn}, s{s_xb}, {XB}")
                    e(f"    s_add_u32 s{s_xbn}, s{s_xbn}, s{s_w1k}")
                    m4(e)
                gp = it * 16 + Q + 3
                if not (last and Q + 3 >= 16):
                    n = vm.need({("w", gp)})
                    key = ("wwait", Q)
                    Ns[key] = min(Ns.get(key, 63), n)
                    e(f"    s_waitcnt vmcnt({Ns[key]})")
                    bread(e, Q + 3)
                mfma(1)
                if ks < 3:
                    plan = [(0, 1), (2, 3), (4, 5), (6,)][q]
                elif last:
                    plan = ()
                else:
                    plan = [(), (0, 1, 2), (3, 4, 5), (6,)][q]
                if plan and plan[0] == 0:
                    aaddr_next(e, (ks + 1) % 4)
                for ee in plan:
                    aread(e, nxt, ee)
                if not (last and Q + 10 >= 16):
                    wdma(e, Q + 10, lambda: vm.issue(("w", it * 16 + Q + 10)))
                mfma(2)
                if Q < 5 and not last:
                    xdma(e, Q, "l", lambda: vm.issue(("x", it + 1)))
                mfma(3)
        e(f"    s_add_u32 s{s_wchunk}, s{s_wchunk}, 32768")
        e(f"    s_add_u32 s{s_xrow}, s{s_xrow}, 128")
        return out

    Ns = {}
    for _ in range(2):
        vms = copy.deepcopy(vm)
        for it in range(3):
            body(vms, it, Ns)
    text = body(copy.deepcopy(vm), 0, Ns)
    NL = {}
    for _ in range(2):
        vml = copy.deepcopy(vms)
        tlast = body(vml, 3, NL, last=True)
    E("L1_loop:")
    for t in text:
        E(t)
    E(f"    s_add_u32 s{s_cc}, s{s_cc}, 1")
    E(f"    s_cmp_lt_u32 s{s_cc}, 3")
    E("    s_cbranch_scc1 L1_loop")
    for t in tlast:
        E(t)
    stamp()

    E("    s_waitcnt vmcnt(0) lgkmcnt(0)")
    E("    s_nop 15")
    E("    s_nop 7")
    E("    s_barrier")
    stamp()
    E(f"    s_lshl_b32 s{s_t}, s{s_wave}, 14")
    E(f"    v_lshlrev_b32 v{v_tmp}, 4, v{v_lane}")
    E(f"    v_add_u32 v{v_tmp+1}, s{s_t}, v{v_tmp}")
    for rg in range(16):
        E(f"    ds_write_b128 v{v_tmp+1}, v[{ACC+4*rg}:{ACC+4*rg+3}] offset:{rg*1024}")
    E("    s_waitcnt lgkmcnt(0)")
    E("    s_barrier")
    stamp()
    E(f"    s_lshl_b32 s{s_t}, s{s_wave}, 11")
    E(f"    v_add_u32 v{v_tmp+1}, s{s_t}, v{v_tmp}")
    E(f"    v_add_u32 v{v_tmp+2}, 0x10000, v{v_tmp+1}")
    P0 = 96
    for sw in range(8):
        base = v_tmp + 1 if sw < 4 else v_tmp + 2
        off = (sw % 4) * 16384
        E(f"    ds_read_b128 v[{P0+8*sw}:{P0+8*sw+3}], v{base} offset:{off}")
        E(f"    ds_read_b128 v[{P0+8*sw+4}:{P0+8*sw+7}], v{base} offset:{off+1024}")
    E("    s_waitcnt lgkmcnt(0)")
    Y = 32
    for i in range(8):
        E(f"    v_add_f32 v{Y+i}, v{P0+i}, v{P0+8+i}")
    for sw in range(2, 8):
        for i in range(8):
            E(f"    v_add_f32 v{Y+i}, v{Y+i}, v{P0+8*sw+i}")
    E(f"    v_lshlrev_b32 v{v_bias}, 16, v{v_bias}")
    PK = 40
    def round8(src, dst):
        for i in range(4):
            E(f"    v_cvt_pk_bf16_f32 v{PK+i}, v{src+2*i}, v{src+2*i+1}")
        for i in range(4):
            E(f"    v_lshlrev_b32 v{dst+2*i}, 16, v{PK+i}")
            E(f"    v_and_b32 v{dst+2*i+1}, 0xffff0000, v{PK+i}")
    round8(Y, Y)
    for i in range(8):
        E(f"    v_add_f32 v{Y+i}, v{Y+i}, v{v_bias}")
    round8(Y, Y)
    E(f"    s_lshl_b32 s{s_t}, s{s_wave}, 10")
    E(f"    s_add_u32 s{s_t}, s{s_t}, 131072")
    E(f"    v_lshlrev_b32 v{v_tmp}, 8, v{v_g}")
    E(f"    v_lshlrev_b32 v{v_tmp+1}, 1, v{v_m}")
    E(f"    v_add_u32 v{v_tmp}, v{v_tmp}, v{v_tmp+1}")
    E(f"    v_add_u32 v{v_tmp}, s{s_t}, v{v_tmp}")
    for p in range(4):
        r0 = 8 * (p // 2) + 2 * (p % 2)
        E(f"    ds_write_b16 v{v_tmp}, v{PK+p} offset:{r0*64}")
        E(f"    ds_write_b16_d16_hi v{v_tmp}, v{PK+p} offset:{(r0+1)*64}")
    E(f"    v_lshlrev_b32 v{v_tmp+1}, 4, v{v_lane}")
    E(f"    v_add_u32 v{v_tmp+1}, s{s_t}, v{v_tmp+1}")
    E("    s_waitcnt lgkmcnt(0)")
    E(f"    ds_read_b128 v[44:47], v{v_tmp+1}")
    E(f"    s_and_b32 s{s_t}, s{s_wave}, 1")
    E(f"    s_lshl_b32 s{s_t}, s{s_t}, 6")
    E(f"    s_lshr_b32 s{s_t+1}, s{s_wave}, 1")
    E(f"    s_add_u32 s{s_t}, s{s_t}, s{s_t+1}")
    E(f"    s_add_u32 s{s_t}, s{s_t}, s{s_l0}")
    E(f"    v_lshrrev_b32 v{v_tmp+2}, 2, v{v_lane}")
    E(f"    v_lshrrev_b32 v{v_tmp+3}, 2, v{v_tmp+2}")
    E(f"    v_lshlrev_b32 v{v_tmp+3}, 4, v{v_tmp+3}")
    E(f"    v_and_b32 v{v_tmp+2}, 3, v{v_tmp+2}")
    E(f"    v_lshlrev_b32 v{v_tmp+2}, 2, v{v_tmp+2}")
    E(f"    v_add_u32 v{v_tmp+2}, v{v_tmp+2}, v{v_tmp+3}")
    E(f"    v_add_u32 v{v_tmp+2}, s{s_t}, v{v_tmp+2}")
    E(f"    s_mul_i32 s{s_t+1}, s{s_b}, {L_}")
    E(f"    v_add_u32 v{v_tmp+3}, s{s_t+1}, v{v_tmp+2}")
    E(f"    v_lshlrev_b32 v{v_tmp+3}, 9, v{v_tmp+3}")
    E(f"    v_and_b32 v{v_tmp+4}, 3, v{v_lane}")
    E(f"    v_lshlrev_b32 v{v_tmp+4}, 4, v{v_tmp+4}")
    E(f"    v_add_u32 v{v_tmp+3}, v{v_tmp+3}, v{v_tmp+4}")
    E(f"    s_lshl_b32 s{s_t+1}, s{s_n0}, 1")
    E(f"    v_add_u32 v{v_tmp+3}, s{s_t+1}, v{v_tmp+3}")
    E(f"    v_cmp_gt_u32 vcc, {L_}, v{v_tmp+2}")
    E(f"    s_and_saveexec_b64 s[{s_t+2}:{s_t+3}], vcc")
    E("    s_cbranch_execz L1_nostore")
    E("    s_waitcnt lgkmcnt(0)")
    E(f"    buffer_store_dwordx4 v[44:47], v{v_tmp+3}, s[{S_O}:{S_O+3}], 0 offen")
    E("L1_nostore:")
    E(f"    s_mov_b64 exec, s[{s_t+2}:{s_t+3}]")
    stamp()
    E(f"    s_sub_u32 s{s_t}, {L_}, s{s_t}")
    E(f"    v_lshlrev_b32 v{v_tmp}, 4, v{v_g}")
    E(f"    v_sub_u32 v{v_tmp}, s{s_t}, v{v_tmp}")
    MV = 48
    def cval(i):
        return 32 * (i // 4) + 4 * (i % 4)
    for i in range(8):
        E(f"    v_cmp_lt_i32 vcc, {cval(i)}, v{v_tmp}")
        E(f"    s_nop 1")
        E(f"    v_cndmask_b32 v{MV+i}, 0, v{Y+i}, vcc")
    E(f"    v_add_f32 v{v_tmp+1}, v{MV}, v{MV+1}")
    for i in range(2, 8):
        E(f"    v_add_f32 v{v_tmp+1}, v{v_tmp+1}, v{MV+i}")
    E(f"    v_mul_f32 v{v_tmp+8}, v{MV}, v{MV}")
    for i in range(1, 8):
        E(f"    v_fma_f32 v{v_tmp+8}, v{MV+i}, v{MV+i}, v{v_tmp+8}")
    def xhalf(v, t):
        E(f"    v_mov_b32 v{t}, v{v}")
        E("    s_nop 1")
        E(f"    v_permlane32_swap_b32 v{v}, v{t}")
        E("    s_nop 1")
        E(f"    v_add_f32 v{v}, v{v}, v{t}")
    xhalf(v_tmp + 1, v_tmp + 2)
    xhalf(v_tmp + 8, v_tmp + 2)
    ST0 = 131072 + 8192
    E(f"    v_lshlrev_b32 v{v_tmp+3}, 5, v{v_m}")
    E(f"    s_lshl_b32 s{s_t}, s{s_wave}, 2")
    E(f"    s_add_u32 s{s_t}, s{s_t}, {ST0}")
    E(f"    v_add_u32 v{v_tmp+3}, s{s_t}, v{v_tmp+3}")
    E(f"    ds_write_b32 v{v_tmp+3}, v{v_tmp+1}")
    E(f"    ds_write_b32 v{v_tmp+3}, v{v_tmp+8} offset:1024")
    E("    s_waitcnt lgkmcnt(0)")
    E("    s_barrier")
    E(f"    s_cmp_lg_u32 s{s_wave}, 0")
    E("    s_cbranch_scc1 L1_end")
    E(f"    v_lshlrev_b32 v{v_tmp+4}, 5, v{v_m}")
    E(f"    v_add_u32 v{v_tmp+4}, {ST0}, v{v_tmp+4}")
    E(f"    ds_read_b128 v[56:59], v{v_tmp+4}")
    E(f"    ds_read_b128 v[60:63], v{v_tmp+4} offset:16")
    E(f"    ds_read_b128 v[64:67], v{v_tmp+4} offset:1024")
    E(f"    ds_read_b128 v[68:71], v{v_tmp+4} offset:1040")
    E(f"    s_sub_u32 s{s_t}, {L_}, s{s_l0}")
    E(f"    s_min_u32 s{s_t}, s{s_t}, 128")
    E(f"    s_mov_b32 s{s_t+4}, s{s_t}")
    E(f"    v_cvt_f32_u32 v{v_tmp+6}, s{s_t}")
    E(f"    v_rcp_f32 v{v_tmp+6}, v{v_tmp+6}")
    E("    s_waitcnt lgkmcnt(0)")
    E(f"    v_add_f32 v{v_tmp+5}, v56, v57")
    for r in range(58, 64):
        E(f"    v_add_f32 v{v_tmp+5}, v{v_tmp+5}, v{r}")
    E(f"    v_add_f32 v56, v64, v65")
    for r in range(66, 72):
        E(f"    v_add_f32 v56, v56, v{r}")
    E(f"    v_mul_f32 v57, v{v_tmp+5}, v{v_tmp+6}")
    E(f"    v_fma_f32 v57, -v{v_tmp+5}, v57, v56")
    E(f"    v_max_f32 v{v_tmp+6}, 0, v57")
    E(f"    v_mul_f32 v{v_tmp+5}, v{v_tmp+5}, v{v_tmp+9}") if False else None
    E(f"    s_lshl_b32 s{s_t}, s{s_b}, 4")
    E(f"    s_add_u32 s{s_t}, s{s_t}, s{s_rt}")
    E(f"    s_lshl_b32 s{s_t}, s{s_t}, 8")
    E(f"    s_add_u32 s{s_t}, s{s_t}, s{s_n0}")
    E(f"    v_add_u32 v{v_tmp+7}, s{s_t}, v{v_m}")
    E(f"    v_lshlrev_b32 v{v_tmp+7}, 3, v{v_tmp+7}")
    E(f"    v_cvt_f32_u32 v56, s{s_t+4}")
    E(f"    v_rcp_f32 v56, v56")
    E(f"    s_nop 0")
    E(f"    v_mul_f32 v56, v{v_tmp+5}, v56")
    E(f"    v_mov_b32 v57, v{v_tmp+6}")
    E(f"    v_cmp_gt_u32 vcc, 32, v{v_lane}")
    E(f"    s_and_saveexec_b64 s[{s_t+2}:{s_t+3}], vcc")
    E(f"    buffer_store_dwordx2 v[56:57], v{v_tmp+7}, s[{S_WSR}:{S_WSR+3}], 0 offen")
    if DIAG:
        stamp()
        stamp(True)
        E("    s_load_dwordx2 s[4:5], s[0:1], 56")
        E("    s_waitcnt lgkmcnt(0)")
        E("    s_add_u32 s4, s4, 0x100000")
        E("    s_addc_u32 s5, s5, 0")
        E("    s_mov_b32 s6, 65536")
        E("    s_mov_b32 s7, 0x00020000")
        E("    s_lshl_b32 s8, s2, 6")
        E("    v_mov_b32 v1, s8")
        for i in range(G["stamp_n"][0]):
            E(f"    v_mov_b32 v2, s{G['s_stamp']+2*i}")
            E(f"    buffer_store_dword v2, v1, s[4:7], 0 offen offset:{4*i}")
    E("L1_end:")
    E("    s_endpgm")
    E("L1_pf:")
    E(f"    v_lshlrev_b32 v{v_tmp}, 9, v{v_lane}")
    E(f"    s_and_b32 s{s_t}, s{s_ct}, 1")
    E(f"    s_lshl_b32 s{s_t}, s{s_t}, 4")
    E(f"    s_add_u32 s{s_t}, s{s_t}, s{s_rt}")
    E(f"    s_lshl_b32 s{s_t}, s{s_t}, 17")
    E(f"    s_lshl_b32 s{s_t+1}, s{s_n0}, 1")
    E(f"    s_add_u32 s{s_t}, s{s_t}, s{s_t+1}")
    E(f"    v_add_u32 v{v_tmp}, s{s_t}, v{v_tmp}")
    for c in range(4):
        if PFMODE & 1:
            E(f"    s_mov_b32 s{s_t}, {c*32768}")
            E(f"    buffer_load_dword v{32+c}, v{v_tmp}, s[{S_W}:{S_W+3}], s{s_t} offen")
        if c < 3:
            E("    s_barrier")
    E("    s_waitcnt vmcnt(0)")
    E("    s_endpgm")
```
